```python
import torch

def _softmax(x, axis=-1):
    return torch.softmax(x, dim=axis)
def _gelu(x):
    return torch.nn.functional.gelu(x, approximate="tanh")
def _silu(x):
    return torch.nn.functional.silu(x)
def _sigmoid(x):
    return torch.sigmoid(x)
def _layernorm(x, axis=-1, eps=1e-5):
    m = x.mean(dim=axis, keepdim=True)
    v = x.var(dim=axis, keepdim=True, unbiased=False)
    return (x - m) / torch.sqrt(v + eps)
def _scatter_add(tgt, idx, src, axis=0):
    return tgt.clone().index_add_(axis, idx, src)
def _segment_sum(src, seg, n):
    out = torch.zeros((n,) + src.shape[1:], dtype=src.dtype)
    return out.index_add_(0, seg, src)
def _pad(x, pw):
    flat = tuple(v for pair in reversed(pw) for v in pair)
    return torch.nn.functional.pad(x, flat)

kernel_name = 'standalone__rezero__sampling'

def setup_inputs():

    _w = (lambda a: (lambda t: t.to(torch.bfloat16) if t.is_floating_point() else t)(torch.as_tensor(a)))
    B, S, D = 1024, 32, 576
    return {
        "x": _w((lambda *s: torch.randn(*s, dtype=torch.bfloat16) * 0.05)(B, S, D)),
        "fx": _w((lambda *s: torch.randn(*s, dtype=torch.bfloat16) * 0.8)(B, S, D)),
        "alpha": _w((lambda *s: torch.randn(*s, dtype=torch.bfloat16) * 0.8)(1) * 0.1),
    }

def reference(x, fx, alpha):
    return x + alpha * fx
```

```python
import sys

NB = 1024 * 32 * 576 * 2
HDR = """; Kernarg layout for this problem (48 bytes, ptrs only, base s[0:1]):
; Override launch geometry by editing the next line (default: block=256,
; grid=ceil(out_elems/256), lds=0). Harness parses it; keep it on one line.
"""
NAME = "standalone__rezero__sampling_kernel"


def compute(X, F, T, nd=4):
    L = []
    for i in range(nd):
        t = T + 4 * (i & 1)
        L += [
            f"v_lshlrev_b32 v{t}, 16, v{F+i}",
            f"v_and_b32 v{t+1}, s20, v{F+i}",
            f"v_pk_mul_f32 v[{t}:{t+1}], v[{t}:{t+1}], s[22:23]",
            f"v_lshlrev_b32 v{t+2}, 16, v{X+i}",
            f"v_and_b32 v{t+3}, s20, v{X+i}",
            f"v_cvt_pk_bf16_f32 v{F+i}, v{t}, v{t+1}",
            f"v_lshlrev_b32 v{t}, 16, v{F+i}",
            f"v_and_b32 v{t+1}, s20, v{F+i}",
            f"v_pk_add_f32 v[{t}:{t+1}], v[{t}:{t+1}], v[{t+2}:{t+3}]",
            f"v_cvt_pk_bf16_f32 v{X+i}, v{t}, v{t+1}",
        ]
    return L


def stamp_start(L):
    L.append("s_memrealtime s[40:41]")


def stamp_end(L, block, nv):
    wpb = block // 64
    L += [
        "s_waitcnt vmcnt(0)",
        "s_memrealtime s[42:43]",
        "s_load_dwordx2 s[44:45], s[0:1], 40",
        "s_getreg_b32 s46, hwreg(HW_REG_XCC_ID)",
        "v_lshrrev_b32 v2, 6, v0",
        f"s_mul_i32 s47, s2, {wpb}",
        "v_add_u32 v2, s47, v2",
        "v_lshlrev_b32 v2, 4, v2",
        "s_waitcnt lgkmcnt(0)",
        "v_mov_b32 v4, s40",
        "v_mov_b32 v5, s46",
        "v_mov_b32 v6, s42",
        "v_mov_b32 v7, s48",
        "v_and_b32 v3, 63, v0",
        "v_cmp_eq_u32 vcc, 0, v3",
        "s_and_saveexec_b64 s[50:51], vcc",
        "global_store_dwordx4 v2, v[4:7], s[44:45]",
    ]


def gen(block=256, U=4, ld="", st="", layout="block", noload=False, nostore=False, stamp=False,
        remap=None, minv=0, lds=0):
    per_wg = block * 16 * U
    assert NB % per_wg == 0
    grid = NB // per_wg
    L = []
    A = L.append
    if stamp:
        stamp_start(L)
    A(f"s_cmp_ge_u32 s2, {grid}")
    A("s_cbranch_scc1 L_end")
    A("s_load_dwordx4 s[4:7], s[0:1], 0")
    A("s_load_dwordx4 s[8:11], s[0:1], 16")
    wg = "s2"
    if remap == "xcd":
        assert grid % 8 == 0
        A("s_and_b32 s38, s2, 7")
        A("s_lshr_b32 s39, s2, 3")
        A(f"s_mul_i32 s38, s38, {grid//8}")
        A("s_add_u32 s38, s38, s39")
        wg = "s38"
    offlist = None
    if layout.startswith("numa"):
        pol = int(layout[4:])
        assert block == 256 and U % 2 == 0
        nblk = U // 2
        A("s_getreg_b32 s36, hwreg(HW_REG_XCC_ID)")
        A("s_and_b32 s37, s36, 3")
        A("s_lshr_b32 s36, s36, 2")
        A("s_and_b32 s36, s36, 1")
        A("s_lshr_b32 s38, s2, 3")
        A("s_lshl_b32 s38, s38, 2")
        A("s_add_u32 s38, s38, s37")
        A(f"s_mul_i32 s3, s38, {nblk*16384}")
        A("s_lshr_b32 s39, s3, 21")
        A("s_xor_b32 s39, s39, s36")
        if pol:
            A("s_xor_b32 s39, s39, 1")
        A("s_and_b32 s39, s39, 1")
        A("s_lshl_b32 s39, s39, 13")
        A("s_add_u32 s3, s3, s39")
        A("v_lshlrev_b32 v1, 4, v0")
        offlist = [(k >> 1) * 16384 + (k & 1) * 4096 for k in range(U)]
        step = None
    elif layout == "block":
        A(f"s_mul_i32 s3, {wg}, {per_wg}")
        A("v_lshlrev_b32 v1, 4, v0")
        step = block * 16
    elif layout == "grid":
        A(f"s_mul_i32 s3, {wg}, {block*16}")
        A("v_lshlrev_b32 v1, 4, v0")
        step = NB // U
    else:
        A(f"s_mul_i32 s3, {wg}, {per_wg}")
        A("v_lshrrev_b32 v2, 6, v0")
        A("v_and_b32 v1, 63, v0")
        A("v_lshlrev_b32 v1, 4, v1")
        A(f"v_mul_u32_u24 v2, {1024*U}, v2")
        A("v_add_u32 v1, v1, v2")
        step = 1024
    A("v_add_u32 v1, s3, v1")
    A("s_mov_b32 s20, 0xffff0000")
    A(f"s_mov_b32 s14, {NB}")
    A("s_mov_b32 s15, 0x20000")
    A(f"s_mov_b32 s18, {NB}")
    A("s_mov_b32 s19, 0x20000")
    A(f"s_mov_b32 s26, {NB}")
    A("s_mov_b32 s27, 0x20000")
    offs = []
    sreg = 52
    for k in range(U):
        o = offlist[k] if offlist else k * step
        base = (o // 4096) * 4096
        offs.append((base, o - base))
    smap = {}
    for (b, r) in offs:
        if b != 0 and b not in smap:
            smap[b] = sreg
            A(f"s_mov_b32 s{sreg}, {b}")
            sreg += 1
    def so(k):
        b, r = offs[k]
        s = "0" if b == 0 else f"s{smap[b]}"
        return s, (f" offset:{r}" if r else "")
    A("s_waitcnt lgkmcnt(0)")
    A("s_load_dword s21, s[8:9], 0")
    A("s_mov_b32 s12, s4")
    A("s_mov_b32 s13, s5")
    A("s_mov_b32 s16, s6")
    A("s_mov_b32 s17, s7")
    T = 2
    D = 10
    X = [D + 8 * k for k in range(U)]
    F = [D + 8 * k + 4 for k in range(U)]
    ldf = (" " + ld) if ld else ""
    stf = (" " + st) if st else ""
    for k in range(U):
        s, o = so(k)
        if not noload:
            A(f"buffer_load_dwordx4 v[{F[k]}:{F[k]+3}], v1, s[16:19], {s} offen{o}{ldf}")
            A(f"buffer_load_dwordx4 v[{X[k]}:{X[k]+3}], v1, s[12:15], {s} offen{o}{ldf}")
    A("s_mov_b32 s24, s10")
    A("s_mov_b32 s25, s11")
    A("s_waitcnt lgkmcnt(0)")
    A("s_lshl_b32 s22, s21, 16")
    A("s_mov_b32 s23, s22")
    for k in range(U):
        n = 2 * (U - 1 - k) + (0 if nostore else k)
        if not noload:
            A(f"s_waitcnt vmcnt({min(n,63)})")
        if stamp and k == 0:
            A("s_memrealtime s[48:49]")
        L.extend(compute(X[k], F[k], T))
        s, o = so(k)
        if not nostore:
            A(f"buffer_store_dwordx4 v[{X[k]}:{X[k]+3}], v1, s[24:27], {s} offen{o}{stf}")
    nv = max(D + 8 * U, minv)
    if stamp:
        stamp_end(L, block, nv)
    return wrap(L, grid, block, nv, sreg, lds)


ALIGN = True


def wrap(L, grid, block, nv, ns, lds=0):
    body = "\n".join(("    " + l) if not l.endswith(":") else l for l in L)
    acc = (nv + 3) // 4 * 4
    import os
    pad = ".p2align 12\n.fill 832, 4, 0xbf810000\n" if not os.environ.get("NOALIGN") else ""
    return f"""{HDR}; @launch grid=({grid},1,1) block=({block},1,1) lds={lds}
.amdgcn_target "amdgcn-amd-amdhsa--gfx950"
.text
.globl {NAME}
{pad}.p2align 8
.type {NAME},@function
{NAME}:
{body}
L_end:
    s_endpgm
.section .rodata,"a"
.p2align 6
.amdhsa_kernel {NAME}
  .amdhsa_next_free_vgpr {nv}
  .amdhsa_next_free_sgpr {ns}
  .amdhsa_accum_offset {acc}
  .amdhsa_group_segment_fixed_size 0
  .amdhsa_kernarg_size 48
  .amdhsa_user_sgpr_count 2
  .amdhsa_user_sgpr_kernarg_segment_ptr 1
  .amdhsa_system_sgpr_workgroup_id_x 1
  .amdhsa_float_denorm_mode_32 3
  .amdhsa_float_denorm_mode_16_64 3
.end_amdhsa_kernel
"""


if __name__ == "__main__":
    import argparse
    p = argparse.ArgumentParser()
    p.add_argument("-o", required=True)
    p.add_argument("--block", type=int, default=256)
    p.add_argument("-U", type=int, default=4)
    p.add_argument("--ld", default="")
    p.add_argument("--st", default="")
    p.add_argument("--layout", default="block")
    p.add_argument("--noload", action="store_true")
    p.add_argument("--nostore", action="store_true")
    p.add_argument("--stamp", action="store_true")
    p.add_argument("--remap", default=None)
    p.add_argument("--minv", type=int, default=0)
    p.add_argument("--lds", type=int, default=0)
    a = p.parse_args()
    open(a.o, "w").write(gen(a.block, a.U, a.ld, a.st, a.layout, a.noload, a.nostore, a.stamp, a.remap, a.minv, a.lds))
```

```python
from gen import NB, NAME, HDR, wrap

MIB = 1 << 20


def compute(X, F, T, AL, nd=4):
    L = []
    for i in range(nd):
        t = T + 4 * (i & 1)
        L += [
            f"v_lshlrev_b32 v{t}, 16, v{F+i}",
            f"v_and_b32 v{t+1}, s20, v{F+i}",
            f"v_pk_mul_f32 v[{t}:{t+1}], v[{t}:{t+1}], {AL}",
            f"v_lshlrev_b32 v{t+2}, 16, v{X+i}",
            f"v_and_b32 v{t+3}, s20, v{X+i}",
            f"v_cvt_pk_bf16_f32 v{F+i}, v{t}, v{t+1}",
            f"v_lshlrev_b32 v{t}, 16, v{F+i}",
            f"v_and_b32 v{t+1}, s20, v{F+i}",
            f"v_pk_add_f32 v[{t}:{t+1}], v[{t}:{t+1}], v[{t+2}:{t+3}]",
            f"v_cvt_pk_bf16_f32 v{X+i}, v{t}, v{t+1}",
        ]
    return L


def gen4(D=4, K=8, nprobe=24, ld="nt", st="sc0 sc1", diag=False, allprobe=False, pollall=False, maxpoll=64,
         force=None, lead=1, glc=True, early=False):
    N = 36
    G = " glc" if glc else ""
    assert N % D == 0 and D <= K <= N - D
    L = []
    A = L.append
    ldf = (" " + ld) if ld else ""
    stf = (" " + st) if st else ""
    SO = [36 + k for k in range(D)]
    assert D <= 8
    if diag:
        A("s_memrealtime s[64:65]")
        for r in [60] + list(range(66, 80)):
            A(f"s_mov_b32 s{r}, 0")
    A("s_cmp_ge_u32 s2, 256")
    A("s_cbranch_scc1 L_end")
    A("s_load_dwordx2 s[12:13], s[0:1], 0")
    A("s_load_dwordx2 s[16:17], s[0:1], 8")
    A("s_load_dwordx2 s[8:9], s[0:1], 16")
    A("s_load_dwordx2 s[24:25], s[0:1], 24")
    A("s_load_dwordx2 s[28:29], s[0:1], 32")
    A("s_lshr_b32 s44, s2, 3")
    A("s_lshl_b32 s44, s44, 15")
    A("s_and_b32 s45, s2, 2")
    A("s_lshl_b32 s45, s45, 13")
    A("s_and_b32 s46, s2, 1")
    A("s_lshl_b32 s46, s46, 12")
    A("s_add_u32 s30, s44, s45")
    A("s_add_u32 s30, s30, s46")
    A(f"s_add_u32 s30, s30, {32*MIB}")
    A("s_lshr_b32 s44, s2, 2")
    A("s_lshr_b32 s45, s2, 3")
    A("s_xor_b32 s44, s44, s45")
    A("s_bitcmp1_b32 s44, 0")
    A("s_cselect_b32 s32, -1, 0")
    A("s_xor_b32 s32, s32, 0xaaaaaaaa")
    A("v_lshlrev_b32 v1, 4, v0")
    A("v_mov_b32 v9, 0")
    A("s_mov_b32 s20, 0xffff0000")
    A(f"s_mov_b32 s14, {NB}")
    A("s_mov_b32 s15, 0x20000")
    A(f"s_mov_b32 s18, {NB}")
    A("s_mov_b32 s19, 0x20000")
    A(f"s_mov_b32 s26, {NB}")
    A("s_mov_b32 s27, 0x20000")
    A(f"s_mov_b32 s35, {NB}")
    A(f"s_mov_b32 s31, 0")
    T = 2
    AL = 10
    FILL = 12
    B = 14
    X = [B + 8 * k for k in range(D)]
    F = [B + 8 * k + 4 for k in range(D)]
    it = {"ld": 0}

    def slot_off(k):
        A(f"s_and_b32 s44, s32, 1")
        A(f"s_lshl_b32 s44, s44, 13")
        A(f"s_add_u32 s{SO[k]}, s30, s44")
        A("s_lshr_b32 s32, s32, 1")
        A(f"s_add_u32 s30, s30, {MIB}")

    def load(k):
        A(f"buffer_load_dwordx4 v[{F[k]}:{F[k]+3}], v1, s[16:19], s{SO[k]} offen{ldf}")
        A(f"buffer_load_dwordx4 v[{X[k]}:{X[k]+3}], v1, s[12:15], s{SO[k]} offen{ldf}")

    def wrap_check_static(i):
        if i == 4:
            A(f"s_sub_u32 s30, s30, {36*MIB}")
    for k in range(D):
        wrap_check_static(k)
        slot_off(k)
    wrap_check_static(D)
    prob = nprobe if not allprobe else 256
    A("v_readfirstlane_b32 s34, v0")
    A("s_lshr_b32 s34, s34, 6")
    A("s_and_b32 s44, s34, 1")
    A("s_lshl_b32 s44, s44, 13")
    A("s_lshr_b32 s45, s34, 1")
    A("s_mul_i32 s45, s45, 0x5000")
    A("s_add_u32 s44, s44, s45")
    A("s_lshl_b32 s45, s2, 15")
    A("s_and_b32 s45, s45, 0x1fffff")
    A("s_add_u32 s44, s44, s45")
    A("s_lshr_b32 s45, s2, 6")
    A("s_lshl_b32 s45, s45, 9")
    A("s_add_u32 s44, s44, s45")
    A(f"s_add_u32 s47, s44, {28*MIB}")
    A("s_lshr_b32 s48, s2, 3")
    if allprobe:
        A("s_mul_i32 s45, s48, 43")
        A("s_lshr_b32 s45, s45, 7")
        A("s_mul_i32 s45, s45, 3")
        A("s_sub_u32 s48, s48, s45")
    A(f"s_cmp_lt_u32 s2, {prob}")
    A("s_waitcnt lgkmcnt(0)")
    if diag:
        A("s_memrealtime s[80:81]")
    A("s_cbranch_scc0 L_noprobe")
    A("s_cmp_eq_u32 s48, 0")
    A("s_cselect_b32 s50, s12, s16")
    A("s_cselect_b32 s51, s13, s17")
    A("s_cmp_eq_u32 s48, 2")
    A("s_cselect_b32 s50, s24, s50")
    A("s_cselect_b32 s51, s25, s51")
    A("s_memtime s[52:53]")
    A("s_load_dword s49, s[50:51], s47")
    A("L_noprobe:")
    if early:
        A("s_cmp_lt_u32 s2, 128")
        A("s_cbranch_scc1 L_noearly")
        A("s_load_dword s63, s[28:29], 64")
        A("L_noearly:")
    A(f"global_load_ushort v{AL}, v9, s[8:9]")
    for k in range(D):
        load(k)
        if k < D - 1:
            A(f"buffer_load_dword v{FILL}, v1, s[12:15], s35 offen")
    if diag:
        A("s_memrealtime s[82:83]")
    A(f"s_cmp_lt_u32 s2, {prob}")
    A("s_cbranch_scc1 L_probe")
    A("L_probed:")
    A(f"s_waitcnt vmcnt({3*D-1})")
    A(f"v_lshlrev_b32 v{AL}, 16, v{AL}")
    A(f"v_mov_b32 v{AL+1}, v{AL}")
    if diag:
        A(f"s_waitcnt vmcnt({3*(D-1)})")
        A("s_memrealtime s[66:67]")
    A("L_loop:")
    kp, ks = divmod(K - D, D)
    pp, ps = divmod(K - D - lead, D) if K - D - lead >= 0 else (None, None)
    wp, ws_ = divmod(4 - D, D) if D < 4 else (None, None)
    for k in range(D):
        A(f"s_waitcnt vmcnt({3*(D-1)})")
        L.extend(compute(X[k], F[k], T, f"v[{AL}:{AL+1}]"))
        A(f"buffer_store_dwordx4 v[{X[k]}:{X[k]+3}], v1, s[24:27], s{SO[k]} offen{stf}")
        if diag and k in (0, D - 1):
            A("s_cmp_lg_u32 s31, 0")
            A(f"s_cbranch_scc1 L_ds{k}")
            A("s_memrealtime s[84:85]" if k == 0 else "s_memrealtime s[86:87]")
            A(f"L_ds{k}:")
        if pollall:
            A("s_cmp_lg_u32 s70, 0")
            A(f"s_cbranch_scc1 L_pa{k}")
            A("s_waitcnt lgkmcnt(0)")
            A("s_add_u32 s71, s71, 1")
            A("s_and_b32 s44, s60, s61")
            A("s_and_b32 s44, s44, s62")
            A("s_bitcmp1_b32 s44, 8")
            A(f"s_cbranch_scc0 L_pb{k}")
            A("s_mov_b32 s70, s72")
            A(f"s_branch L_pa{k}")
            A(f"L_pb{k}:")
            A("s_memrealtime s[72:73]")
            A("s_load_dwordx4 s[60:63], s[28:29], 0" + G)
            A(f"L_pa{k}:")
        if ps == k and not pollall:
            A(f"s_cmp_eq_u32 s31, {pp}")
            A(f"s_cbranch_scc0 L_nopoll")
            A("s_load_dwordx4 s[60:63], s[28:29], 0" + G)
            A("L_nopoll:")
        if ks == k:
            A(f"s_cmp_eq_u32 s31, {kp}")
            A("s_cbranch_scc1 L_resolve")
            A("L_resolved:")
        if ws_ == k:
            A(f"s_cmp_eq_u32 s31, {wp}")
            A(f"s_cselect_b32 s44, {36*MIB}, 0")
            A("s_sub_u32 s30, s30, s44")
        slot_off(k)
        A(f"s_cmp_eq_u32 s31, {N//D-1}")
        A(f"s_cselect_b32 s{SO[k]}, s35, s{SO[k]}")
        load(k)
    A("s_add_u32 s31, s31, 1")
    A(f"s_cmp_lg_u32 s31, {N//D}")
    A("s_cbranch_scc1 L_loop")
    if diag:
        L.extend([
            "s_waitcnt vmcnt(0)",
            "s_memrealtime s[68:69]",
            "s_load_dwordx2 s[44:45], s[0:1], 40",
            "s_getreg_b32 s46, hwreg(HW_REG_XCC_ID)",
            "v_lshrrev_b32 v2, 6, v0",
            "s_mul_i32 s47, s2, 4",
            "v_add_u32 v2, s47, v2",
            "v_lshlrev_b32 v2, 4, v2",
            "v_add_u32 v3, 0x100000, v2",
            "s_waitcnt lgkmcnt(0)",
            "v_mov_b32 v4, s64",
            "v_mov_b32 v5, s46",
            "v_mov_b32 v6, s68",
            "v_mov_b32 v7, s66",
            "v_mov_b32 v14, s74",
            "v_mov_b32 v15, s76",
            "v_mov_b32 v16, s70",
            "v_mov_b32 v17, s71",
            "v_and_b32 v8, 63, v0",
            "v_cmp_eq_u32 vcc, 0, v8",
            "s_and_saveexec_b64 s[50:51], vcc",
            "global_store_dwordx4 v2, v[4:7], s[44:45]",
            "global_store_dwordx4 v3, v[14:17], s[44:45]",
            "v_add_u32 v3, 0x100000, v3",
            "v_mov_b32 v18, s80",
            "v_mov_b32 v19, s82",
            "v_mov_b32 v20, s84",
            "v_mov_b32 v21, s86",
            "global_store_dwordx4 v3, v[18:21], s[44:45]",
        ])
    A("s_endpgm")

    A("L_probe:")
    A("s_waitcnt lgkmcnt(0)")
    A("s_memtime s[54:55]")
    A("s_lshl_b32 s44, s34, 2")
    A("v_mov_b32 v2, s44")
    A("s_waitcnt lgkmcnt(0)")
    A("s_sub_u32 s44, s54, s52")
    if diag:
        A("s_mov_b32 s74, s44")
        A("s_memrealtime s[76:77]")
    A("v_mov_b32 v3, s44")
    A("ds_write_b32 v2, v3")
    A("s_waitcnt lgkmcnt(0)")
    A("s_barrier")
    A("s_cmp_lg_u32 s34, 0")
    A("s_cbranch_scc1 L_probed")
    if allprobe:
        A(f"s_cmp_ge_u32 s2, {nprobe}")
        A("s_cbranch_scc1 L_probed")
    A("ds_read_b128 v[4:7], v9")
    A("s_getreg_b32 s44, hwreg(HW_REG_XCC_ID)")
    A("s_sub_u32 s45, s44, s2")
    A("s_and_b32 s45, s45, 7")
    A("s_lshl_b32 s45, s45, 1")
    A("s_lshr_b32 s44, s44, 2")
    A("s_and_b32 s44, s44, 1")
    A("s_or_b32 s45, s45, s44")
    A("s_or_b32 s45, s45, 0x100")
    A("s_xor_b32 s46, s45, 1")
    A("s_lshl_b32 s44, s48, 2")
    A("v_mov_b32 v8, s44")
    A("v_mov_b32 v2, s45")
    A("v_mov_b32 v3, s46")
    A("s_waitcnt lgkmcnt(0)")
    A("v_add_u32 v4, v4, v6")
    A("v_add_u32 v5, v5, v7")
    A("v_cmp_lt_u32 vcc, v5, v4")
    A("v_cndmask_b32 v2, v2, v3, vcc")
    A("v_mov_b32 v3, 0")
    A("s_mov_b64 s[56:57], exec")
    A("s_mov_b64 exec, 1")
    A("global_atomic_cmpswap v8, v[2:3], s[28:29] sc1")
    A("s_mov_b64 exec, s[56:57]")
    if diag:
        A("s_memrealtime s[76:77]")
    A("s_branch L_probed")

    A("L_resolve:")
    A(f"s_mov_b32 s45, {maxpoll}")
    if pp is None and not pollall:
        A("s_load_dwordx4 s[60:63], s[28:29], 0" + G)
    A("L_res1:")
    A("s_waitcnt lgkmcnt(0)")
    A("s_and_b32 s44, s60, s61")
    A("s_and_b32 s44, s44, s62")
    A("s_bitcmp1_b32 s44, 8")
    A("s_cbranch_scc1 L_have")
    A("s_load_dwordx4 s[60:63], s[28:29], 0" + G)
    A("s_sub_u32 s45, s45, 1")
    A("s_cmp_lg_u32 s45, 0")
    A("s_cbranch_scc1 L_res1")
    A("s_mov_b64 s[56:57], exec")
    A("s_mov_b64 exec, 7")
    A("v_and_b32 v8, 63, v0")
    A("v_lshlrev_b32 v8, 2, v8")
    A("v_mov_b32 v2, 0x100")
    A("v_mov_b32 v3, 0")
    A("global_atomic_cmpswap v4, v8, v[2:3], s[28:29] sc0 sc1")
    A("s_waitcnt vmcnt(0) lgkmcnt(0)")
    A("v_or_b32 v4, 0x100, v4")
    A("s_mov_b64 exec, s[56:57]")
    A("s_nop 1")
    A("v_readlane_b32 s60, v4, 0")
    A("v_readlane_b32 s61, v4, 1")
    A("v_readlane_b32 s62, v4, 2")
    A("L_have:")
    if diag:
        if not pollall:
            A(f"s_sub_u32 s71, {maxpoll}, s45")
            A("s_memrealtime s[72:73]")
            A("s_waitcnt lgkmcnt(0)")
            A("s_mov_b32 s70, s72")
        A("s_and_b32 s44, s60, 15")
        A("s_lshl_b32 s44, s44, 16")
        A("s_or_b32 s71, s71, s44")
        A("s_and_b32 s44, s61, 1")
        A("s_lshl_b32 s44, s44, 20")
        A("s_or_b32 s71, s71, s44")
        A("s_and_b32 s44, s62, 1")
        A("s_lshl_b32 s44, s44, 21")
        A("s_or_b32 s71, s71, s44")
    A("s_and_b32 s44, s60, s61")
    A("s_or_b32 s45, s60, s61")
    A("s_and_b32 s45, s45, s62")
    A("s_or_b32 s44, s44, s45")
    if force is not None:
        A(f"s_mov_b32 s44, {force}")
    A("s_lshr_b32 s45, s60, 1")
    A("s_add_u32 s45, s45, s2")
    A("s_lshr_b32 s45, s45, 2")
    A("s_xor_b32 s44, s44, s45")
    m = 0
    for i in range(K, N):
        par = ((i - 4) >> 1) & 1 if i >= 4 else ((32 + i) >> 1) & 1
        m |= par << (i - K)
    m0, m1 = m & 0xffffffff, m >> 32
    A("s_bitcmp1_b32 s44, 0")
    assert m1 == 0 and K >= 4
    A("s_cselect_b32 s32, -1, 0")
    A(f"s_xor_b32 s32, s32, {m0:#x}")
    A("s_branch L_resolved")
    nv = B + 8 * D
    s = wrap(L, 256, 256, nv, 96 if diag else 64, 64)
    return s


if __name__ == "__main__":
    import argparse
    p = argparse.ArgumentParser()
    p.add_argument("-o", required=True)
    p.add_argument("-D", type=int, default=4)
    p.add_argument("-K", type=int, default=8)
    p.add_argument("--nprobe", type=int, default=24)
    p.add_argument("--ld", default="nt")
    p.add_argument("--st", default="sc0 sc1")
    p.add_argument("--diag", action="store_true")
    p.add_argument("--allprobe", action="store_true")
    p.add_argument("--pollall", action="store_true")
    p.add_argument("--maxpoll", type=int, default=64)
    p.add_argument("--force", type=int, default=None)
    p.add_argument("--lead", type=int, default=1)
    p.add_argument("--noglc", action="store_true")
    p.add_argument("--early", action="store_true")
    a = p.parse_args()
    open(a.o, "w").write(gen4(a.D, a.K, a.nprobe, a.ld, a.st, a.diag, a.allprobe, a.pollall, a.maxpoll, a.force, a.lead, not a.noglc, a.early))
```

```python
from gen import NB, NAME, HDR, wrap
from gen4 import compute

MIB = 1 << 20


def gen5(D=4, K=8, nprobe=24, ld="nt", st="sc0 sc1", diag=False, maxpoll=32, force=None, pref=True, hop=False,
         rounds=3, thr=150, sleep=8, nopub=False, sleep2=0):
    N = 36
    assert N % D == 0 and max(D, 4) <= K <= N - D
    L = []
    A = L.append
    ldf = (" " + ld) if ld else ""
    stf = (" " + st) if st else ""
    SO = [36 + k for k in range(D)]
    assert D <= 8
    if diag:
        A("s_memrealtime s[64:65]")
    A("s_cmp_ge_u32 s2, 256")
    A("s_cbranch_scc1 L_end")
    A("s_load_dwordx2 s[12:13], s[0:1], 0")
    A("s_load_dwordx2 s[16:17], s[0:1], 8")
    A("s_load_dwordx2 s[8:9], s[0:1], 16")
    A("s_load_dwordx2 s[24:25], s[0:1], 24")
    A("s_load_dwordx2 s[28:29], s[0:1], 32")
    A("v_readfirstlane_b32 s34, v0")
    if diag:
        for r in (74, 76, 80, 82, 84, 86):
            A(f"s_mov_b32 s{r}, 0")
    A("s_cmp_lt_u32 s34, 256")
    A("s_cbranch_scc1 L_worker")
    A("@HELPER@")
    A("L_worker:")
    A("s_lshr_b32 s44, s2, 3")
    A("s_lshl_b32 s30, s44, 15")
    A("s_and_b32 s45, s2, 2")
    A("s_lshl_b32 s45, s45, 13")
    A("s_and_b32 s46, s2, 1")
    A("s_lshl_b32 s46, s46, 12")
    A("s_add_u32 s30, s30, s45")
    A("s_add_u32 s30, s30, s46")
    A(f"s_add_u32 s30, s30, {32*MIB}")
    A("s_lshr_b32 s45, s2, 2")
    A("s_xor_b32 s44, s44, s45")
    A("s_bitcmp1_b32 s44, 0")
    A("s_cselect_b32 s32, -1, 0")
    A("s_xor_b32 s32, s32, 0xaaaaaaaa")
    A("v_lshlrev_b32 v1, 4, v0")
    A("s_mov_b32 s20, 0xffff0000")
    A(f"s_mov_b32 s14, {NB}")
    A("s_mov_b32 s15, 0x20000")
    A("s_mov_b32 s18, s14")
    A("s_mov_b32 s19, s15")
    A("s_mov_b32 s26, s14")
    A("s_mov_b32 s27, s15")
    A("s_mov_b32 s31, 0")
    T = 2
    AL = 10
    FILL = 12
    B = 14
    A(f"v_mov_b32 v{AL+1}, 0")
    X = [B + 8 * k for k in range(D)]
    F = [B + 8 * k + 4 for k in range(D)]

    def slot_off(k):
        A(f"s_and_b32 s44, s32, 1")
        A(f"s_lshl_b32 s44, s44, 13")
        A(f"s_add_u32 s{SO[k]}, s30, s44")
        A("s_lshr_b32 s32, s32, 1")
        A(f"s_add_u32 s30, s30, {MIB}")

    def load(k):
        A(f"buffer_load_dwordx4 v[{F[k]}:{F[k]+3}], v1, s[16:19], s{SO[k]} offen{ldf}")
        A(f"buffer_load_dwordx4 v[{X[k]}:{X[k]+3}], v1, s[12:15], s{SO[k]} offen{ldf}")

    for k in range(D + 1):
        if k == 4:
            A(f"s_sub_u32 s30, s30, {36*MIB}")
        if k < D:
            slot_off(k)
    A("s_waitcnt lgkmcnt(0)")
    if diag:
        A("s_memrealtime s[80:81]")
    A(f"global_load_ushort v{AL}, v{AL+1}, s[8:9]")
    for k in range(D):
        load(k)
        if k < D - 1:
            A(f"buffer_load_dword v{FILL}, v1, s[12:15], s14 offen")
    if diag:
        A("s_memrealtime s[82:83]")
    A("s_barrier")
    A(f"s_waitcnt vmcnt({3*D-1})")
    A(f"v_lshlrev_b32 v{AL}, 16, v{AL}")
    A(f"v_mov_b32 v{AL+1}, v{AL}")
    if diag:
        A(f"s_waitcnt vmcnt({3*(D-1)})")
        A("s_memrealtime s[66:67]")
    A("L_loop:")
    kp, ks = divmod(K - D, D)
    wp, ws_ = divmod(4 - D, D) if D < 4 else (None, None)
    npad = 0
    for k in range(D):
        A(f"s_waitcnt vmcnt({3*(D-1)})")
        C = compute(X[k], F[k], T, f"v[{AL}:{AL+1}]")
        for j, ins in enumerate(C):
            if hop and j % 20 == 0:
                A(f"L_pad{npad}:")
                A(f"s_cbranch_execz L_pad{npad+1}")
                npad += 1
            A(ins)
        A(f"buffer_store_dwordx4 v[{X[k]}:{X[k]+3}], v1, s[24:27], s{SO[k]} offen{stf}")
        if diag and k in (0, D - 1):
            A("s_cmp_lg_u32 s31, 0")
            A(f"s_cbranch_scc1 L_ds{k}")
            A("s_memrealtime s[84:85]" if k == 0 else "s_memrealtime s[86:87]")
            A(f"L_ds{k}:")
        if ks == k:
            A(f"s_cmp_eq_u32 s31, {kp}")
            A("s_cbranch_scc1 L_resolve")
            A("L_resolved:")
        if ws_ == k:
            A(f"s_cmp_eq_u32 s31, {wp}")
            A(f"s_cselect_b32 s44, {36*MIB}, 0")
            A("s_sub_u32 s30, s30, s44")
        slot_off(k)
        A(f"s_cmp_eq_u32 s31, {N//D-1}")
        A(f"s_cselect_b32 s{SO[k]}, s14, s{SO[k]}")
        load(k)
    A("s_add_u32 s31, s31, 1")
    A(f"s_cmp_lg_u32 s31, {N//D}")
    A("s_cbranch_scc1 L_loop")

    def record():
        L.extend([
            "s_waitcnt vmcnt(0)",
            "s_memrealtime s[68:69]",
            "s_load_dwordx2 s[44:45], s[0:1], 40",
            "s_getreg_b32 s46, hwreg(HW_REG_XCC_ID)",
            "v_lshrrev_b32 v2, 6, v0",
            "s_mul_i32 s47, s2, 5",
            "v_add_u32 v2, s47, v2",
            "v_lshlrev_b32 v2, 4, v2",
            "v_add_u32 v3, 0x100000, v2",
            "s_waitcnt lgkmcnt(0)",
            "v_mov_b32 v4, s64",
            "v_mov_b32 v5, s46",
            "v_mov_b32 v6, s68",
            "v_mov_b32 v7, s66",
            "v_mov_b32 v12, s74",
            "v_mov_b32 v13, s76",
            "v_mov_b32 v14, s70",
            "v_mov_b32 v15, s71",
            "s_mov_b64 exec, 1",
            "global_store_dwordx4 v2, v[4:7], s[44:45]",
            "global_store_dwordx4 v3, v[12:15], s[44:45]",
            "v_add_u32 v3, 0x100000, v3",
            "v_mov_b32 v16, s80",
            "v_mov_b32 v17, s82",
            "v_mov_b32 v18, s84",
            "v_mov_b32 v19, s86",
            "global_store_dwordx4 v3, v[16:19], s[44:45]",
        ])
    if diag:
        A("L_record:")
        record()
    A("s_endpgm")

    A("L_resolve:")
    if hop:
        A(f"L_pad{npad}:")
        A("s_cbranch_execz L_hopped")
    if diag:
        A("s_memrealtime s[76:77]")
    A("v_mov_b32 v3, 0")
    A("L_wait:")
    A("ds_read_b32 v2, v3")
    A("s_waitcnt lgkmcnt(0)")
    A("v_readfirstlane_b32 s32, v2")
    A("s_cmp_eq_u32 s32, 0")
    A("s_cbranch_scc1 L_wait")
    if diag:
        A("s_memrealtime s[70:71]")
        A("s_waitcnt lgkmcnt(0)")
        A("s_mov_b32 s71, 0")
    A("s_branch L_resolved")

    hstart = len(L)
    A("v_mov_b32 v5, 0")
    A("ds_write_b32 v5, v5")
    if pref:
        A("s_getpc_b64 s[50:51]")
        A("L_pc:")
        A(f"s_sub_u32 s50, s50, L_pc-{NAME}")
        A("s_subb_u32 s51, s51, 0")
        A("v_and_b32 v2, 63, v0")
        A("v_lshlrev_b32 v2, 7, v2")
        A(f"v_min_u32 v2, L_end-{NAME}, v2")
        A("global_load_dword v3, v2, s[50:51]")
    A("s_lshl_b32 s45, s2, 15")
    A("s_and_b32 s45, s45, 0x1fffff")
    A("s_lshr_b32 s46, s2, 6")
    A("s_lshl_b32 s46, s46, 9")
    A("s_add_u32 s45, s45, s46")
    A(f"s_add_u32 s45, s45, {28*MIB}")
    A("s_cmp_ge_u32 s2, 24")
    A("s_addc_u32 s35, s2, 0")
    A("s_and_b32 s35, s35, 1")
    A("s_lshl_b32 s46, s35, 13")
    A("s_add_u32 s47, s45, s46")
    A("s_xor_b32 s48, s47, 0x2000")
    A("s_lshr_b32 s49, s2, 3")
    if nprobe > 24:
        A("s_mul_i32 s45, s49, 43")
        A("s_lshr_b32 s45, s45, 7")
        A("s_mul_i32 s45, s45, 3")
        A("s_sub_u32 s49, s49, s45")
    A("s_getreg_b32 s44, hwreg(HW_REG_XCC_ID)")
    A("s_sub_u32 s45, s44, s2")
    A("s_and_b32 s45, s45, 7")
    A("s_lshl_b32 s45, s45, 1")
    A("s_bfe_u32 s44, s44, 0x10002")
    A("s_or_b32 s33, s45, s44")
    A("s_or_b32 s33, s33, 0x100")
    A(f"s_mov_b32 s31, {rounds}")
    A(f"s_cmp_lt_u32 s2, {nprobe}")
    A("s_waitcnt lgkmcnt(0)")
    A("s_cbranch_scc0 L_noprobe")
    A("s_cmp_eq_u32 s49, 0")
    A("s_cselect_b32 s50, s12, s16")
    A("s_cselect_b32 s51, s13, s17")
    A("s_cmp_eq_u32 s49, 2")
    A("s_cselect_b32 s50, s24, s50")
    A("s_cselect_b32 s51, s25, s51")
    A("L_round:")
    A("s_memtime s[52:53]")
    A("s_load_dword s58, s[50:51], s47")
    A("s_load_dword s59, s[50:51], s48")
    A("s_waitcnt lgkmcnt(1)")
    A("s_memtime s[54:55]")
    A("s_waitcnt lgkmcnt(0)")
    A("s_memtime s[56:57]")
    A("s_waitcnt lgkmcnt(0)")
    A("s_sub_u32 s44, s56, s54")
    if diag:
        A("s_sub_u32 s45, s54, s52")
        A("s_lshl_b32 s46, s44, 16")
        A("s_or_b32 s45, s45, s46")
        for r in range(min(rounds, 3)):
            A(f"s_cmp_eq_u32 s31, {rounds - r}")
            A(f"s_cselect_b32 s{80+2*r}, s45, s{80+2*r}")
    if not nopub:
        A(f"s_cmp_gt_u32 s44, {thr}")
        A("s_cbranch_scc1 L_publish")
    A("s_xor_b32 s35, s35, 1")
    A("s_add_u32 s44, s47, 0x400")
    A("s_add_u32 s47, s48, 0x400")
    A("s_mov_b32 s48, s44")
    A("s_sub_u32 s31, s31, 1")
    A("s_cmp_lg_u32 s31, 0")
    A("s_cbranch_scc1 L_round")
    if not nopub:
        A("s_branch L_after")
    A("L_publish:")
    A("s_xor_b32 s33, s33, s35")
    A("s_lshl_b32 s44, s49, 2")
    A("v_mov_b32 v8, s44")
    A("v_mov_b32 v4, s33")
    A("v_mov_b32 v5, 0")
    A("s_mov_b64 exec, 1")
    A("global_atomic_cmpswap v8, v[4:5], s[28:29] sc1")
    A("s_mov_b64 exec, -1")
    if diag:
        A("s_memrealtime s[76:77]")
        A("s_mov_b32 s74, s33")
    A("L_after:")
    A("s_barrier")
    if sleep2:
        A(f"s_sleep {sleep2}")
    A("s_branch L_poll")
    A("L_noprobe:")
    A("s_barrier")
    if hop:
        A("s_waitcnt vmcnt(0)")
        A("s_mov_b64 exec, 0")
        A("s_branch L_pad0")
        A("L_hopped:")
        A("s_mov_b64 exec, -1")
    if sleep:
        A(f"s_sleep {sleep}")
    A("L_poll:")
    if diag:
        A("s_memrealtime s[66:67]")
    A("s_load_dwordx4 s[60:63], s[28:29], 0")
    A(f"s_mov_b32 s31, {maxpoll}")
    A("v_mov_b32 v8, 0")
    A("s_waitcnt lgkmcnt(0)")
    A("L_check:")
    A("s_and_b32 s44, s60, s61")
    A("s_and_b32 s44, s44, s62")
    A("s_bitcmp1_b32 s44, 8")
    A("s_cbranch_scc1 L_have")
    A("global_load_dwordx4 v[4:7], v8, s[28:29] sc1")
    A("s_waitcnt vmcnt(0)")
    A("v_readfirstlane_b32 s60, v4")
    A("v_readfirstlane_b32 s61, v5")
    A("v_readfirstlane_b32 s62, v6")
    A("s_sub_u32 s31, s31, 1")
    A("s_cmp_lg_u32 s31, 0")
    A("s_cbranch_scc1 L_check")
    A("v_and_b32 v8, 63, v0")
    A("v_lshlrev_b32 v8, 2, v8")
    A("v_mov_b32 v4, 0x100")
    A("v_mov_b32 v5, 0")
    A("s_mov_b64 exec, 7")
    A("global_atomic_cmpswap v6, v8, v[4:5], s[28:29] sc0 sc1")
    A("s_waitcnt vmcnt(0)")
    A("s_mov_b64 exec, -1")
    A("v_readlane_b32 s60, v6, 0")
    A("v_readlane_b32 s61, v6, 1")
    A("v_readlane_b32 s62, v6, 2")
    A("L_have:")
    if diag:
        A("s_memrealtime s[70:71]")
        A("s_waitcnt lgkmcnt(0)")
        A(f"s_sub_u32 s71, {maxpoll}, s31")
        A("s_and_b32 s44, s60, 15")
        A("s_lshl_b32 s44, s44, 16")
        A("s_or_b32 s71, s71, s44")
        A("s_and_b32 s44, s61, 1")
        A("s_lshl_b32 s44, s44, 20")
        A("s_or_b32 s71, s71, s44")
        A("s_and_b32 s44, s62, 1")
        A("s_lshl_b32 s44, s44, 21")
        A("s_or_b32 s71, s71, s44")
    A("s_and_b32 s44, s60, s61")
    A("s_or_b32 s45, s60, s61")
    A("s_and_b32 s45, s45, s62")
    A("s_or_b32 s44, s44, s45")
    if force is not None:
        A(f"s_mov_b32 s44, {force}")
    A("s_lshr_b32 s45, s60, 1")
    A("s_add_u32 s45, s45, s2")
    A("s_lshr_b32 s45, s45, 2")
    A("s_xor_b32 s44, s44, s45")
    m = 0
    for i in range(K, N):
        m |= (((i - 4) >> 1) & 1) << (i - K)
    A("s_bitcmp1_b32 s44, 0")
    A("s_cselect_b32 s32, -1, 0")
    A(f"s_xor_b32 s32, s32, {m:#x}")
    A("v_mov_b32 v4, s32")
    A("v_mov_b32 v5, 0")
    A("ds_write_b32 v5, v4")
    if diag:
        A("s_branch L_record")
    else:
        A("s_endpgm")
    H = L[hstart:]
    del L[hstart:]
    i = L.index("@HELPER@")
    L[i:i + 1] = H
    nv = max(B + 8 * D, 20)
    return wrap(L, 256, 320, nv, 96 if diag else 64, 64)


if __name__ == "__main__":
    import argparse
    p = argparse.ArgumentParser()
    p.add_argument("-o", required=True)
    p.add_argument("-D", type=int, default=4)
    p.add_argument("-K", type=int, default=8)
    p.add_argument("--nprobe", type=int, default=24)
    p.add_argument("--ld", default="nt")
    p.add_argument("--st", default="sc0 sc1")
    p.add_argument("--diag", action="store_true")
    p.add_argument("--maxpoll", type=int, default=32)
    p.add_argument("--force", type=int, default=None)
    p.add_argument("--nopref", action="store_true")
    p.add_argument("--hop", action="store_true")
    p.add_argument("--rounds", type=int, default=3)
    p.add_argument("--thr", type=int, default=150)
    p.add_argument("--sleep", type=int, default=8)
    p.add_argument("--nopub", action="store_true")
    p.add_argument("--sleep2", type=int, default=0)
    a = p.parse_args()
    open(a.o, "w").write(gen5(a.D, a.K, a.nprobe, a.ld, a.st, a.diag, a.maxpoll, a.force, not a.nopref, a.hop,
                              a.rounds, a.thr, a.sleep, a.nopub, a.sleep2))
```

```python
from gen import NB, NAME, HDR, wrap
from gen4 import compute
MIB = 1 << 20

def genlay():
    L = []
    A = L.append
    A("s_cmp_ge_u32 s2, 256")
    A("s_cbranch_scc1 L_end")
    A("s_load_dwordx2 s[12:13], s[0:1], 0")
    A("s_load_dwordx2 s[16:17], s[0:1], 8")
    A("s_load_dwordx2 s[8:9], s[0:1], 16")
    A("s_load_dwordx2 s[24:25], s[0:1], 24")
    A("s_load_dwordx2 s[28:29], s[0:1], 32")
    A("v_readfirstlane_b32 s34, v0")
    A("s_mov_b32 s20, 0xffff0000")
    A(f"s_mov_b32 s14, {NB}")
    A("s_mov_b32 s15, 0x20000")
    A("s_mov_b32 s18, s14")
    A("s_mov_b32 s19, s15")
    A("s_mov_b32 s26, s14")
    A("s_mov_b32 s27, s15")
    A("s_waitcnt lgkmcnt(0)")
    A("s_cmp_lg_u32 s34, 0")
    A("s_cbranch_scc1 L_work")
    A("s_getreg_b32 s60, hwreg(HW_REG_XCC_ID)")
    A("s_bfe_u32 s61, s60, 0x10002")
    A("s_mov_b64 exec, 1")
    A("s_mov_b32 s30, s2")
    A("L_gran:")
    A("s_cmp_ge_u32 s30, 864")
    A("s_cbranch_scc1 L_pdone")
    A("s_mov_b32 s31, s30")
    A("s_mov_b32 s50, s12")
    A("s_mov_b32 s51, s13")
    A("s_cmp_ge_u32 s31, 288")
    A("s_cselect_b32 s44, 288, 0")
    A("s_cselect_b32 s50, s16, s50")
    A("s_cselect_b32 s51, s17, s51")
    A("s_sub_u32 s31, s31, s44")
    A("s_cmp_ge_u32 s31, 288")
    A("s_cselect_b32 s44, 288, 0")
    A("s_cselect_b32 s50, s24, s50")
    A("s_cselect_b32 s51, s25, s51")
    A("s_sub_u32 s31, s31, s44")
    A("s_lshl_b32 s32, s31, 17")
    A("s_add_u32 s44, s32, 0x1f80")
    A("v_mov_b32 v2, s44")
    A("global_load_dword v3, v2, s[50:51]")
    A("s_waitcnt vmcnt(0)")
    A("s_mov_b32 s36, -1")
    A("s_mov_b32 s37, -1")
    A("s_mov_b32 s33, 0")
    A("L_samp:")
    for h in range(2):
        A("s_lshl_b32 s44, s33, 14")
        A("s_add_u32 s44, s44, s32")
        A("s_lshl_b32 s45, s33, 8")
        A("s_add_u32 s44, s44, s45")
        if h:
            A("s_add_u32 s44, s44, 0x2000")
        A("v_mov_b32 v2, s44")
        A("s_memtime s[52:53]")
        A("s_waitcnt lgkmcnt(0)")
        A("global_load_dword v3, v2, s[50:51]")
        A("s_waitcnt vmcnt(0)")
        A("s_memtime s[54:55]")
        A("s_waitcnt lgkmcnt(0)")
        A("s_sub_u32 s44, s54, s52")
        A(f"s_min_u32 s{36+h}, s{36+h}, s44")
    A("s_add_u32 s33, s33, 1")
    A("s_cmp_lt_u32 s33, 8")
    A("s_cbranch_scc1 L_samp")
    A("s_sub_i32 s44, s36, s37")
    A("s_abs_i32 s45, s44")
    A("s_and_b32 s46, s30, 31")
    A("s_lshl_b32 s47, 1, s46")
    A("s_lshr_b32 s46, s30, 5")
    A("s_lshl_b32 s46, s46, 2")
    A("s_cmp_ge_u32 s45, 100")
    A("s_cselect_b32 s48, s47, 0")
    A("s_cmp_gt_i32 s44, 0")
    A("s_cselect_b32 s49, 1, 0")
    A("s_xor_b32 s49, s49, s61")
    A("s_cmp_eq_u32 s49, 1")
    A("s_cselect_b32 s49, s47, 0")
    A("v_mov_b32 v2, s46")
    A("v_mov_b32 v3, s48")
    A("v_mov_b32 v4, s49")
    A("global_atomic_or v2, v3, s[28:29] sc1")
    A("global_atomic_or v2, v4, s[28:29] offset:108 sc1")
    A("s_cmp_ge_u32 s30, 2")
    A("s_cbranch_scc1 L_nraw")
    A("s_lshl_b32 s44, s36, 16")
    A("s_or_b32 s44, s44, s37")
    A("v_mov_b32 v3, s44")
    A("s_lshl_b32 s44, s30, 2")
    A("v_mov_b32 v2, s44")
    A("global_store_dword v2, v3, s[28:29] offset:248")
    A("L_nraw:")
    A("s_add_u32 s30, s30, 256")
    A("s_branch L_gran")
    A("L_pdone:")
    A("s_cmp_lg_u32 s2, 0")
    A("s_cbranch_scc1 L_noptr")
    A("v_mov_b32 v2, 0")
    for i, (lo, hi) in enumerate(((12, 13), (16, 17), (24, 25))):
        A(f"s_lshr_b64 s[44:45], s[{lo}:{hi}], 12")
        A(f"v_mov_b32 v{4+i}, s44")
    A("v_mov_b32 v7, s60")
    A("global_store_dwordx4 v2, v[4:7], s[28:29] offset:216")
    A("L_noptr:")
    A("s_waitcnt vmcnt(0)")
    A("s_mov_b64 exec, -1")
    A("L_work:")
    A("s_barrier")
    A("v_mov_b32 v11, 0")
    A("global_load_ushort v10, v11, s[8:9]")
    A("v_lshlrev_b32 v1, 4, v0")
    A("s_lshl_b32 s30, s2, 12")
    A("s_mov_b32 s31, 0")
    A("s_waitcnt vmcnt(0)")
    A("v_lshlrev_b32 v10, 16, v10")
    A("v_mov_b32 v11, v10")
    A("L_loop:")
    A("buffer_load_dwordx4 v[18:21], v1, s[16:19], s30 offen nt")
    A("buffer_load_dwordx4 v[14:17], v1, s[12:15], s30 offen nt")
    A("s_waitcnt vmcnt(0)")
    L.extend(compute(14, 18, 2, "v[10:11]"))
    A("buffer_store_dwordx4 v[14:17], v1, s[24:27], s30 offen sc0 sc1")
    A(f"s_add_u32 s30, s30, {MIB}")
    A("s_add_u32 s31, s31, 1")
    A("s_cmp_lt_u32 s31, 36")
    A("s_cbranch_scc1 L_loop")
    return wrap(L, 256, 256, 24, 64, 0)

if __name__ == "__main__":
    import sys
    open(sys.argv[1], "w").write(genlay())
```

```python
from gen import NB, NAME, HDR, wrap
from gen4 import compute
MIB = 1 << 20

def genlay():
    L = []
    A = L.append
    A("s_cmp_ge_u32 s2, 256")
    A("s_cbranch_scc1 L_end")
    A("s_load_dwordx2 s[12:13], s[0:1], 0")
    A("s_load_dwordx2 s[16:17], s[0:1], 8")
    A("s_load_dwordx2 s[8:9], s[0:1], 16")
    A("s_load_dwordx2 s[24:25], s[0:1], 24")
    A("s_load_dwordx2 s[28:29], s[0:1], 32")
    A("v_readfirstlane_b32 s34, v0")
    A("s_mov_b32 s20, 0xffff0000")
    A(f"s_mov_b32 s14, {NB}")
    A("s_mov_b32 s15, 0x20000")
    A("s_mov_b32 s18, s14")
    A("s_mov_b32 s19, s15")
    A("s_mov_b32 s26, s14")
    A("s_mov_b32 s27, s15")
    A("s_waitcnt lgkmcnt(0)")
    A("s_cmp_lg_u32 s34, 0")
    A("s_cbranch_scc1 L_work")
    A("s_getreg_b32 s60, hwreg(HW_REG_XCC_ID)")
    A("s_bfe_u32 s61, s60, 0x10002")
    A("s_mov_b64 exec, 1")
    A("s_mov_b32 s30, s2")
    A("L_gran:")
    A("s_cmp_ge_u32 s30, 480")
    A("s_cbranch_scc1 L_pdone")
    A("s_mov_b32 s31, s30")
    A("s_mov_b32 s50, s12")
    A("s_mov_b32 s51, s13")
    A("s_cmp_ge_u32 s31, 160")
    A("s_cselect_b32 s44, 160, 0")
    A("s_cselect_b32 s50, s16, s50")
    A("s_cselect_b32 s51, s17, s51")
    A("s_sub_u32 s31, s31, s44")
    A("s_cmp_ge_u32 s31, 160")
    A("s_cselect_b32 s44, 160, 0")
    A("s_cselect_b32 s50, s24, s50")
    A("s_cselect_b32 s51, s25, s51")
    A("s_sub_u32 s31, s31, s44")
    A("s_cmp_ge_u32 s31, 144")
    A("s_cbranch_scc1 L_nraw")
    A("s_lshl_b32 s32, s31, 18")
    A("s_add_u32 s44, s32, 0x1f80")
    A("v_mov_b32 v2, s44")
    A("global_load_dword v3, v2, s[50:51]")
    A("s_waitcnt vmcnt(0)")
    A("s_mov_b32 s36, -1")
    A("s_mov_b32 s37, -1")
    A("s_mov_b32 s33, 0")
    A("L_samp:")
    for h in range(2):
        A("s_lshl_b32 s44, s33, 14")
        A("s_add_u32 s44, s44, s32")
        A("s_lshl_b32 s45, s33, 8")
        A("s_add_u32 s44, s44, s45")
        if h:
            A("s_add_u32 s44, s44, 0x2000")
        A("v_mov_b32 v2, s44")
        A("s_memtime s[52:53]")
        A("s_waitcnt lgkmcnt(0)")
        A("global_load_dword v3, v2, s[50:51]")
        A("s_waitcnt vmcnt(0)")
        A("s_memtime s[54:55]")
        A("s_waitcnt lgkmcnt(0)")
        A("s_sub_u32 s44, s54, s52")
        A(f"s_min_u32 s{36+h}, s{36+h}, s44")
    A("s_add_u32 s33, s33, 1")
    A("s_cmp_lt_u32 s33, 8")
    A("s_cbranch_scc1 L_samp")
    A("s_sub_i32 s44, s36, s37")
    A("s_abs_i32 s45, s44")
    A("s_and_b32 s46, s30, 31")
    A("s_lshl_b32 s47, 1, s46")
    A("s_lshr_b32 s46, s30, 5")
    A("s_lshl_b32 s46, s46, 2")
    A("s_cmp_ge_u32 s45, 60")
    A("s_cselect_b32 s48, 0, 1")
    A("s_cmp_gt_i32 s44, 0")
    A("s_cselect_b32 s49, 1, 0")
    A("s_xor_b32 s49, s49, s61")
    A("s_cmp_eq_u32 s49, 1")
    A("s_cselect_b32 s49, s47, 0")
    A("v_mov_b32 v2, s46")
    A("v_mov_b32 v3, s48")
    A("v_mov_b32 v4, s49")
    A("global_atomic_or v2, v4, s[28:29] sc1")
    A("v_mov_b32 v2, 0")
    A("global_atomic_add v2, v3, s[28:29] offset:60 sc1")
    A("L_nraw:")
    A("s_add_u32 s30, s30, 256")
    A("s_branch L_gran")
    A("L_pdone:")
    A("s_cmp_lg_u32 s2, 0")
    A("s_cbranch_scc1 L_noptr")
    A("v_mov_b32 v2, 0")
    for i, (lo, hi) in enumerate(((12, 13), (16, 17), (24, 25))):
        A(f"s_lshr_b64 s[44:45], s[{lo}:{hi}], 20")
        A("s_lshl_b32 s44, s44, 16")
        A(f"v_mov_b32 v{4+i}, s44")
        A(f"global_atomic_or v2, v{4+i}, s[28:29] offset:{20*i+16} sc1")
    A("s_lshl_b32 s44, s60, 16")
    A("v_mov_b32 v7, s44")
    A("global_atomic_add v2, v7, s[28:29] offset:60 sc1")
    A("L_noptr:")
    A("s_waitcnt vmcnt(0)")
    A("s_mov_b64 exec, -1")
    A("L_work:")
    A("s_barrier")
    A("v_mov_b32 v11, 0")
    A("global_load_ushort v10, v11, s[8:9]")
    A("v_lshlrev_b32 v1, 4, v0")
    A("s_lshl_b32 s30, s2, 12")
    A("s_mov_b32 s31, 0")
    A("s_waitcnt vmcnt(0)")
    A("v_lshlrev_b32 v10, 16, v10")
    A("v_mov_b32 v11, v10")
    A("L_loop:")
    A("buffer_load_dwordx4 v[18:21], v1, s[16:19], s30 offen nt")
    A("buffer_load_dwordx4 v[14:17], v1, s[12:15], s30 offen nt")
    A("s_waitcnt vmcnt(0)")
    L.extend(compute(14, 18, 2, "v[10:11]"))
    A("buffer_store_dwordx4 v[14:17], v1, s[24:27], s30 offen sc0 sc1")
    A(f"s_add_u32 s30, s30, {MIB}")
    A("s_add_u32 s31, s31, 1")
    A("s_cmp_lt_u32 s31, 36")
    A("s_cbranch_scc1 L_loop")
    return wrap(L, 256, 256, 24, 64, 0)

if __name__ == "__main__":
    import sys
    open(sys.argv[1], "w").write(genlay())
```

```python
from gen import NB, NAME, HDR, wrap
from gen4 import compute
import genlay
MIB = 1 << 20

def work(L):
    A = L.append
    A("v_mov_b32 v11, 0")
    A("global_load_ushort v10, v11, s[8:9]")
    A("v_lshlrev_b32 v1, 4, v0")
    A("s_lshl_b32 s30, s2, 12")
    A("s_mov_b32 s31, 0")
    A("s_waitcnt vmcnt(0)")
    A("v_lshlrev_b32 v10, 16, v10")
    A("v_mov_b32 v11, v10")
    A("L_loop:")
    A("buffer_load_dwordx4 v[18:21], v1, s[16:19], s30 offen nt")
    A("buffer_load_dwordx4 v[14:17], v1, s[12:15], s30 offen nt")
    A("s_waitcnt vmcnt(0)")
    L.extend(compute(14, 18, 2, "v[10:11]"))
    A("buffer_store_dwordx4 v[14:17], v1, s[24:27], s30 offen sc0 sc1")
    A(f"s_add_u32 s30, s30, {MIB}")
    A("s_add_u32 s31, s31, 1")
    A("s_cmp_lt_u32 s31, 36")
    A("s_cbranch_scc1 L_loop")

def spin(L, reg):
    A = L.append
    A("L_spin:")
    A("s_memrealtime s[66:67]")
    A("s_waitcnt lgkmcnt(0)")
    A("s_sub_u32 s44, s66, s64")
    A(f"s_cmp_lt_u32 s44, {reg}")
    A("s_cbranch_scc1 L_spin")

def head(L):
    A = L.append
    A("s_memrealtime s[64:65]")
    A("s_cmp_ge_u32 s2, 256")
    A("s_cbranch_scc1 L_end")
    A("s_load_dwordx2 s[12:13], s[0:1], 0")
    A("s_load_dwordx2 s[16:17], s[0:1], 8")
    A("s_load_dwordx2 s[8:9], s[0:1], 16")
    A("s_load_dwordx2 s[24:25], s[0:1], 24")
    A("s_load_dwordx2 s[28:29], s[0:1], 32")
    A("v_readfirstlane_b32 s34, v0")
    A("s_mov_b32 s20, 0xffff0000")
    A(f"s_mov_b32 s14, {NB}")
    A("s_mov_b32 s15, 0x20000")
    A("s_mov_b32 s18, s14")
    A("s_mov_b32 s19, s15")
    A("s_mov_b32 s26, s14")
    A("s_mov_b32 s27, s15")
    A("s_waitcnt lgkmcnt(0)")

def rot(mx):
    L = []
    A = L.append
    head(L)
    work(L)
    A("s_getreg_b32 s60, hwreg(HW_REG_XCC_ID)")
    A("s_sub_u32 s60, s60, s2")
    A("s_and_b32 s60, s60, 7")
    if not mx:
        A("s_sub_u32 s60, 7, s60")
    A("s_mul_i32 s60, s60, 1000")
    A("s_add_u32 s60, s60, 6000")
    spin(L, "s60")
    return wrap(L, 256, 256, 24, 72, 0)

def lay():
    src = genlay.genlay().split("\n")
    i = next(k for k, l in enumerate(src) if l.startswith(NAME + ":"))
    j = next(k for k, l in enumerate(src) if l.startswith("L_end:"))
    L = ["s_memrealtime s[64:65]"] + [l.strip() for l in src[i + 1:j]]
    A = L.append
    A("s_cmp_lg_u32 s34, 0")
    A("s_cbranch_scc1 L_end")
    A("s_mov_b64 exec, 1")
    A("v_mov_b32 v2, 0")
    A("v_mov_b32 v3, 1")
    A("global_atomic_add v4, v2, v3, s[28:29] offset:64 sc0 sc1")
    A("s_waitcnt vmcnt(0)")
    A("v_readfirstlane_b32 s44, v4")
    A("s_cmp_lg_u32 s44, 255")
    A("s_cbranch_scc1 L_end")
    A("s_mov_b32 s62, 0")
    A("s_mov_b32 s63, 0")
    for b in range(3):
        A(f"global_load_dwordx4 v[4:7], v2, s[28:29] offset:{20*b} sc0 sc1")
        A("s_waitcnt vmcnt(0)")
        A("s_mov_b32 s45, 0")
        for k in range(4):
            A(f"v_readfirstlane_b32 s44, v{4+k}")
            A("s_xor_b32 s44, s44, 0xff00ff00")
            A("s_bcnt1_i32_b32 s44, s44")
            A("s_add_u32 s45, s45, s44")
        A("s_sub_u32 s46, 128, s45")
        A("s_cmp_gt_u32 s45, 64")
        A(f"s_cselect_b32 s47, {1<<b}, 0")
        A("s_or_b32 s63, s63, s47")
        A("s_min_u32 s45, s45, s46")
        A("s_add_u32 s62, s62, s45")
    A("s_mul_i32 s63, s63, 20000")
    A("s_mul_i32 s62, s62, 100")
    A("s_add_u32 s60, s62, s63")
    A("s_add_u32 s60, s60, 10000")
    spin(L, "s60")
    return wrap(L, 256, 256, 24, 72, 0)

if __name__ == "__main__":
    open("var/enc_rmax.s", "w").write(rot(True))
    open("var/enc_rmin.s", "w").write(rot(False))
    open("var/enc_lay.s", "w").write(lay())
```

```python
from gen import NB, NAME, HDR, wrap
from gen4 import compute

MIB = 1 << 20


def gen5(D=4, K=8, nprobe=24, ld="nt", st="sc0 sc1", diag=False, maxpoll=32, force=None, pref=True, hop=False,
         rounds=3, thr=150, sleep=8, nopub=False, sleep2=0, nowait=False, enc=None):
    N = 36
    assert N % D == 0 and max(D, 4) <= K <= N - D
    L = []
    A = L.append
    ldf = (" " + ld) if ld else ""
    stf = (" " + st) if st else ""
    SO = [36 + k for k in range(D)]
    assert D <= 8
    if diag:
        A("s_memrealtime s[64:65]")
    A("s_cmp_ge_u32 s2, 256")
    A("s_cbranch_scc1 L_end")
    A("s_load_dwordx2 s[12:13], s[0:1], 0")
    A("s_load_dwordx2 s[16:17], s[0:1], 8")
    A("s_load_dwordx2 s[8:9], s[0:1], 16")
    A("s_load_dwordx2 s[24:25], s[0:1], 24")
    A("s_load_dwordx2 s[28:29], s[0:1], 32")
    A("v_readfirstlane_b32 s34, v0")
    if diag:
        for r in (74, 76, 80, 82, 84, 86):
            A(f"s_mov_b32 s{r}, 0")
    A("s_cmp_lt_u32 s34, 256")
    A("s_cbranch_scc1 L_worker")
    A("@HELPER@")
    A("L_worker:")
    A("s_lshr_b32 s44, s2, 3")
    A("s_lshl_b32 s30, s44, 15")
    A("s_and_b32 s45, s2, 2")
    A("s_lshl_b32 s45, s45, 13")
    A("s_and_b32 s46, s2, 1")
    A("s_lshl_b32 s46, s46, 12")
    A("s_add_u32 s30, s30, s45")
    A("s_add_u32 s30, s30, s46")
    A(f"s_add_u32 s30, s30, {32*MIB}")
    A("s_lshr_b32 s45, s2, 2")
    A("s_xor_b32 s44, s44, s45")
    A("s_bitcmp1_b32 s44, 0")
    A("s_cselect_b32 s32, -1, 0")
    A("s_xor_b32 s32, s32, 0xaaaaaaaa")
    A("v_lshlrev_b32 v1, 4, v0")
    A("s_mov_b32 s20, 0xffff0000")
    A(f"s_mov_b32 s14, {NB}")
    A("s_mov_b32 s15, 0x20000")
    A("s_mov_b32 s18, s14")
    A("s_mov_b32 s19, s15")
    A("s_mov_b32 s26, s14")
    A("s_mov_b32 s27, s15")
    A("s_mov_b32 s31, 0")
    T = 2
    AL = 10
    FILL = 12
    B = 14
    A(f"v_mov_b32 v{AL+1}, 0")
    X = [B + 8 * k for k in range(D)]
    F = [B + 8 * k + 4 for k in range(D)]

    def slot_off(k):
        A(f"s_and_b32 s44, s32, 1")
        A(f"s_lshl_b32 s44, s44, 13")
        A(f"s_add_u32 s{SO[k]}, s30, s44")
        A("s_lshr_b32 s32, s32, 1")
        A(f"s_add_u32 s30, s30, {MIB}")

    def load(k):
        A(f"buffer_load_dwordx4 v[{F[k]}:{F[k]+3}], v1, s[16:19], s{SO[k]} offen{ldf}")
        A(f"buffer_load_dwordx4 v[{X[k]}:{X[k]+3}], v1, s[12:15], s{SO[k]} offen{ldf}")

    for k in range(D + 1):
        if k == 4:
            A(f"s_sub_u32 s30, s30, {36*MIB}")
        if k < D:
            slot_off(k)
    A("s_waitcnt lgkmcnt(0)")
    if diag:
        A("s_memrealtime s[80:81]")
    A(f"global_load_ushort v{AL}, v{AL+1}, s[8:9]")
    for k in range(D):
        load(k)
        if k < D - 1:
            A(f"buffer_load_dword v{FILL}, v1, s[12:15], s14 offen")
    if diag:
        A("s_memrealtime s[82:83]")
    A("s_barrier")
    A(f"s_waitcnt vmcnt({3*D-1})")
    A(f"v_lshlrev_b32 v{AL}, 16, v{AL}")
    A(f"v_mov_b32 v{AL+1}, v{AL}")
    if diag:
        A(f"s_waitcnt vmcnt({3*(D-1)})")
        A("s_memrealtime s[66:67]")
    A("L_loop:")
    kp, ks = divmod(K - D, D)
    wp, ws_ = divmod(4 - D, D) if D < 4 else (None, None)
    npad = 0
    for k in range(D):
        A(f"s_waitcnt vmcnt({3*(D-1)})")
        C = compute(X[k], F[k], T, f"v[{AL}:{AL+1}]")
        for j, ins in enumerate(C):
            if hop and j % 20 == 0:
                A(f"L_pad{npad}:")
                A(f"s_cbranch_execz L_pad{npad+1}")
                npad += 1
            A(ins)
        A(f"buffer_store_dwordx4 v[{X[k]}:{X[k]+3}], v1, s[24:27], s{SO[k]} offen{stf}")
        if diag and k in (0, D - 1):
            A("s_cmp_lg_u32 s31, 0")
            A(f"s_cbranch_scc1 L_ds{k}")
            A("s_memrealtime s[84:85]" if k == 0 else "s_memrealtime s[86:87]")
            A(f"L_ds{k}:")
        if ks == k:
            A(f"s_cmp_eq_u32 s31, {kp}")
            A("s_cbranch_scc1 L_resolve")
            A("L_resolved:")
        if ws_ == k:
            A(f"s_cmp_eq_u32 s31, {wp}")
            A(f"s_cselect_b32 s44, {36*MIB}, 0")
            A("s_sub_u32 s30, s30, s44")
        slot_off(k)
        A(f"s_cmp_eq_u32 s31, {N//D-1}")
        A(f"s_cselect_b32 s{SO[k]}, s14, s{SO[k]}")
        load(k)
    A("s_add_u32 s31, s31, 1")
    A(f"s_cmp_lg_u32 s31, {N//D}")
    A("s_cbranch_scc1 L_loop")

    def record():
        L.extend([
            "s_waitcnt vmcnt(0)",
            "s_memrealtime s[68:69]",
            "s_load_dwordx2 s[44:45], s[0:1], 40",
            "s_getreg_b32 s46, hwreg(HW_REG_XCC_ID)",
            "v_lshrrev_b32 v2, 6, v0",
            "s_mul_i32 s47, s2, 5",
            "v_add_u32 v2, s47, v2",
            "v_lshlrev_b32 v2, 4, v2",
            "v_add_u32 v3, 0x100000, v2",
            "s_waitcnt lgkmcnt(0)",
            "v_mov_b32 v4, s64",
            "v_mov_b32 v5, s46",
            "v_mov_b32 v6, s68",
            "v_mov_b32 v7, s66",
            "v_mov_b32 v12, s74",
            "v_mov_b32 v13, s76",
            "v_mov_b32 v14, s70",
            "v_mov_b32 v15, s71",
            "s_mov_b64 exec, 1",
            "global_store_dwordx4 v2, v[4:7], s[44:45]",
            "global_store_dwordx4 v3, v[12:15], s[44:45]",
            "v_add_u32 v3, 0x100000, v3",
            "v_mov_b32 v16, s80",
            "v_mov_b32 v17, s82",
            "v_mov_b32 v18, s84",
            "v_mov_b32 v19, s86",
            "global_store_dwordx4 v3, v[16:19], s[44:45]",
        ])
    if diag:
        A("L_record:")
        record()
    A("s_endpgm")

    A("L_resolve:")
    if hop:
        A(f"L_pad{npad}:")
        A("s_cbranch_execz L_hopped")
    if diag:
        A("s_memrealtime s[76:77]")
    A("v_mov_b32 v3, 0")
    A("L_wait:")
    A("ds_read_b32 v2, v3")
    A("s_waitcnt lgkmcnt(0)")
    A("v_readfirstlane_b32 s32, v2")
    A("s_cmp_eq_u32 s32, 0")
    A("s_cbranch_scc1 L_wait")
    if diag:
        A("s_memrealtime s[70:71]")
        A("s_waitcnt lgkmcnt(0)")
        A("s_mov_b32 s71, 0")
    A("s_branch L_resolved")

    hstart = len(L)
    A("v_mov_b32 v5, 0")
    if nowait:
        m0 = 0
        for i in range(K, N):
            m0 |= (((i - 4) >> 1) & 1) << (i - K)
        A("s_lshr_b32 s45, s2, 2")
        A(f"s_xor_b32 s44, s45, {force}")
        A("s_bitcmp1_b32 s44, 0")
        A("s_cselect_b32 s32, -1, 0")
        A(f"s_xor_b32 s32, s32, {m0:#x}")
        A("v_mov_b32 v4, s32")
        A("ds_write_b32 v5, v4")
    else:
        A("ds_write_b32 v5, v5")
    if pref:
        A("s_getpc_b64 s[50:51]")
        A("L_pc:")
        A(f"s_sub_u32 s50, s50, L_pc-{NAME}")
        A("s_subb_u32 s51, s51, 0")
        A("v_and_b32 v2, 63, v0")
        A("v_lshlrev_b32 v2, 7, v2")
        A(f"v_min_u32 v2, L_end-{NAME}, v2")
        A("global_load_dword v3, v2, s[50:51]")
    A("s_lshl_b32 s45, s2, 15")
    A("s_and_b32 s45, s45, 0x1fffff")
    A("s_lshr_b32 s46, s2, 6")
    A("s_lshl_b32 s46, s46, 9")
    A("s_add_u32 s45, s45, s46")
    A(f"s_add_u32 s45, s45, {28*MIB}")
    A("s_cmp_ge_u32 s2, 24")
    A("s_addc_u32 s35, s2, 0")
    A("s_and_b32 s35, s35, 1")
    A("s_lshl_b32 s46, s35, 13")
    A("s_add_u32 s47, s45, s46")
    A("s_xor_b32 s48, s47, 0x2000")
    A("s_lshr_b32 s49, s2, 3")
    if nprobe > 24:
        A("s_mul_i32 s45, s49, 43")
        A("s_lshr_b32 s45, s45, 7")
        A("s_mul_i32 s45, s45, 3")
        A("s_sub_u32 s49, s49, s45")
    A("s_getreg_b32 s44, hwreg(HW_REG_XCC_ID)")
    A("s_sub_u32 s45, s44, s2")
    A("s_and_b32 s45, s45, 7")
    A("s_lshl_b32 s45, s45, 1")
    A("s_bfe_u32 s44, s44, 0x10002")
    A("s_or_b32 s33, s45, s44")
    A("s_or_b32 s33, s33, 0x100")
    A(f"s_mov_b32 s31, {rounds}")
    A(f"s_cmp_lt_u32 s2, {nprobe}")
    A("s_waitcnt lgkmcnt(0)")
    A("s_cbranch_scc0 L_noprobe")
    A("s_cmp_eq_u32 s49, 0")
    A("s_cselect_b32 s50, s12, s16")
    A("s_cselect_b32 s51, s13, s17")
    A("s_cmp_eq_u32 s49, 2")
    A("s_cselect_b32 s50, s24, s50")
    A("s_cselect_b32 s51, s25, s51")
    A("L_round:")
    A("s_memtime s[52:53]")
    A("s_load_dword s58, s[50:51], s47")
    A("s_load_dword s59, s[50:51], s48")
    A("s_waitcnt lgkmcnt(1)")
    A("s_memtime s[54:55]")
    A("s_waitcnt lgkmcnt(0)")
    A("s_memtime s[56:57]")
    A("s_waitcnt lgkmcnt(0)")
    A("s_sub_u32 s44, s56, s54")
    if diag:
        A("s_sub_u32 s45, s54, s52")
        A("s_lshl_b32 s46, s44, 16")
        A("s_or_b32 s45, s45, s46")
        for r in range(min(rounds, 3)):
            A(f"s_cmp_eq_u32 s31, {rounds - r}")
            A(f"s_cselect_b32 s{80+2*r}, s45, s{80+2*r}")
    if not nopub:
        A(f"s_cmp_gt_u32 s44, {thr}")
        A("s_cbranch_scc1 L_publish")
    A("s_xor_b32 s35, s35, 1")
    A("s_add_u32 s44, s47, 0x400")
    A("s_add_u32 s47, s48, 0x400")
    A("s_mov_b32 s48, s44")
    A("s_sub_u32 s31, s31, 1")
    A("s_cmp_lg_u32 s31, 0")
    A("s_cbranch_scc1 L_round")
    if not nopub:
        A("s_branch L_after")
    A("L_publish:")
    A("s_xor_b32 s33, s33, s35")
    A("s_lshl_b32 s44, s49, 2")
    A("v_mov_b32 v8, s44")
    A("v_mov_b32 v4, s33")
    A("v_mov_b32 v5, 0")
    A("s_mov_b64 exec, 1")
    A("global_atomic_cmpswap v8, v[4:5], s[28:29] sc1")
    A("s_mov_b64 exec, -1")
    if diag:
        A("s_memrealtime s[76:77]")
        A("s_mov_b32 s74, s33")
    A("L_after:")
    A("s_barrier")
    if nowait:
        A("s_endpgm")
    if sleep2:
        A(f"s_sleep {sleep2}")
    A("s_branch L_poll")
    A("L_noprobe:")
    A("s_barrier")
    if nowait:
        A("s_endpgm")
    if hop:
        A("s_waitcnt vmcnt(0)")
        A("s_mov_b64 exec, 0")
        A("s_branch L_pad0")
        A("L_hopped:")
        A("s_mov_b64 exec, -1")
    if sleep:
        A(f"s_sleep {sleep}")
    A("L_poll:")
    if diag:
        A("s_memrealtime s[66:67]")
    A("s_load_dwordx4 s[60:63], s[28:29], 0")
    A(f"s_mov_b32 s31, {maxpoll}")
    A("v_mov_b32 v8, 0")
    A("s_waitcnt lgkmcnt(0)")
    A("L_check:")
    A("s_and_b32 s44, s60, s61")
    A("s_and_b32 s44, s44, s62")
    A("s_bitcmp1_b32 s44, 8")
    A("s_cbranch_scc1 L_have")
    A("global_load_dwordx4 v[4:7], v8, s[28:29] sc1")
    A("s_waitcnt vmcnt(0)")
    A("v_readfirstlane_b32 s60, v4")
    A("v_readfirstlane_b32 s61, v5")
    A("v_readfirstlane_b32 s62, v6")
    A("s_sub_u32 s31, s31, 1")
    A("s_cmp_lg_u32 s31, 0")
    A("s_cbranch_scc1 L_check")
    A("v_and_b32 v8, 63, v0")
    A("v_lshlrev_b32 v8, 2, v8")
    A("v_mov_b32 v4, 0x100")
    A("v_mov_b32 v5, 0")
    A("s_mov_b64 exec, 7")
    A("global_atomic_cmpswap v6, v8, v[4:5], s[28:29] sc0 sc1")
    A("s_waitcnt vmcnt(0)")
    A("s_mov_b64 exec, -1")
    A("v_readlane_b32 s60, v6, 0")
    A("v_readlane_b32 s61, v6, 1")
    A("v_readlane_b32 s62, v6, 2")
    A("L_have:")
    if diag:
        A("s_memrealtime s[70:71]")
        A("s_waitcnt lgkmcnt(0)")
        A(f"s_sub_u32 s71, {maxpoll}, s31")
        A("s_and_b32 s44, s60, 15")
        A("s_lshl_b32 s44, s44, 16")
        A("s_or_b32 s71, s71, s44")
        A("s_and_b32 s44, s61, 1")
        A("s_lshl_b32 s44, s44, 20")
        A("s_or_b32 s71, s71, s44")
        A("s_and_b32 s44, s62, 1")
        A("s_lshl_b32 s44, s44, 21")
        A("s_or_b32 s71, s71, s44")
    A("s_and_b32 s44, s60, s61")
    A("s_or_b32 s45, s60, s61")
    A("s_and_b32 s45, s45, s62")
    A("s_or_b32 s44, s44, s45")
    if force is not None:
        A(f"s_mov_b32 s44, {force}")
    A("s_lshr_b32 s45, s60, 1")
    A("s_add_u32 s45, s45, s2")
    A("s_lshr_b32 s45, s45, 2")
    A("s_xor_b32 s44, s44, s45")
    m = 0
    for i in range(K, N):
        m |= (((i - 4) >> 1) & 1) << (i - K)
    A("s_bitcmp1_b32 s44, 0")
    A("s_cselect_b32 s32, -1, 0")
    A(f"s_xor_b32 s32, s32, {m:#x}")
    A("v_mov_b32 v4, s32")
    A("v_mov_b32 v5, 0")
    A("ds_write_b32 v5, v4")
    if diag:
        A("s_branch L_record")
    else:
        A("s_endpgm")
    H = L[hstart:]
    del L[hstart:]
    i = L.index("@HELPER@")
    L[i:i + 1] = H
    nv = max(B + 8 * D, 20)
    return wrap(L, 256, 320, nv, 96 if diag else 64, 64)


if __name__ == "__main__":
    import argparse
    p = argparse.ArgumentParser()
    p.add_argument("-o", required=True)
    p.add_argument("-D", type=int, default=4)
    p.add_argument("-K", type=int, default=8)
    p.add_argument("--nprobe", type=int, default=24)
    p.add_argument("--ld", default="nt")
    p.add_argument("--st", default="sc0 sc1")
    p.add_argument("--diag", action="store_true")
    p.add_argument("--maxpoll", type=int, default=32)
    p.add_argument("--force", type=int, default=None)
    p.add_argument("--nopref", action="store_true")
    p.add_argument("--hop", action="store_true")
    p.add_argument("--rounds", type=int, default=3)
    p.add_argument("--thr", type=int, default=150)
    p.add_argument("--sleep", type=int, default=8)
    p.add_argument("--nopub", action="store_true")
    p.add_argument("--sleep2", type=int, default=0)
    p.add_argument("--nowait", action="store_true")
    p.add_argument("--enc", default=None)
    a = p.parse_args()
    open(a.o, "w").write(gen5(a.D, a.K, a.nprobe, a.ld, a.st, a.diag, a.maxpoll, a.force, not a.nopref, a.hop,
                              a.rounds, a.thr, a.sleep, a.nopub, a.sleep2, a.nowait, a.enc))
```

```python
from gen import NB, NAME, HDR, wrap
from gen4 import compute
import genlay
MIB = 1 << 20

def work(L):
    A = L.append
    A("v_mov_b32 v11, 0")
    A("global_load_ushort v10, v11, s[8:9]")
    A("v_lshlrev_b32 v1, 4, v0")
    A("s_lshl_b32 s30, s2, 12")
    A("s_mov_b32 s31, 0")
    A("s_waitcnt vmcnt(0)")
    A("v_lshlrev_b32 v10, 16, v10")
    A("v_mov_b32 v11, v10")
    A("L_loop:")
    A("buffer_load_dwordx4 v[18:21], v1, s[16:19], s30 offen nt")
    A("buffer_load_dwordx4 v[14:17], v1, s[12:15], s30 offen nt")
    A("s_waitcnt vmcnt(0)")
    L.extend(compute(14, 18, 2, "v[10:11]"))
    A("buffer_store_dwordx4 v[14:17], v1, s[24:27], s30 offen sc0 sc1")
    A(f"s_add_u32 s30, s30, {MIB}")
    A("s_add_u32 s31, s31, 1")
    A("s_cmp_lt_u32 s31, 36")
    A("s_cbranch_scc1 L_loop")

def spin(L, reg):
    A = L.append
    A("L_spin:")
    A("s_memrealtime s[66:67]")
    A("s_waitcnt lgkmcnt(0)")
    A("s_sub_u32 s44, s66, s64")
    A(f"s_cmp_lt_u32 s44, {reg}")
    A("s_cbranch_scc1 L_spin")

def head(L):
    A = L.append
    A("s_memrealtime s[64:65]")
    A("s_cmp_ge_u32 s2, 256")
    A("s_cbranch_scc1 L_end")
    A("s_load_dwordx2 s[12:13], s[0:1], 0")
    A("s_load_dwordx2 s[16:17], s[0:1], 8")
    A("s_load_dwordx2 s[8:9], s[0:1], 16")
    A("s_load_dwordx2 s[24:25], s[0:1], 24")
    A("s_load_dwordx2 s[28:29], s[0:1], 32")
    A("v_readfirstlane_b32 s34, v0")
    A("s_mov_b32 s20, 0xffff0000")
    A(f"s_mov_b32 s14, {NB}")
    A("s_mov_b32 s15, 0x20000")
    A("s_mov_b32 s18, s14")
    A("s_mov_b32 s19, s15")
    A("s_mov_b32 s26, s14")
    A("s_mov_b32 s27, s15")
    A("s_waitcnt lgkmcnt(0)")

def rot(mx):
    L = []
    A = L.append
    head(L)
    work(L)
    A("s_getreg_b32 s60, hwreg(HW_REG_XCC_ID)")
    A("s_sub_u32 s60, s60, s2")
    A("s_and_b32 s60, s60, 7")
    if not mx:
        A("s_sub_u32 s60, 7, s60")
    A("s_mul_i32 s60, s60, 1000")
    A("s_add_u32 s60, s60, 6000")
    spin(L, "s60")
    return wrap(L, 256, 256, 24, 72, 0)

def lay():
    src = genlay.genlay().split("\n")
    i = next(k for k, l in enumerate(src) if l.startswith(NAME + ":"))
    j = next(k for k, l in enumerate(src) if l.startswith("L_end:"))
    L = ["s_memrealtime s[64:65]"] + [l.strip() for l in src[i + 1:j]]
    A = L.append
    A("s_cmp_lg_u32 s34, 0")
    A("s_cbranch_scc1 L_end")
    A("s_mov_b64 exec, 1")
    A("v_mov_b32 v2, 0")
    A("v_mov_b32 v3, 1")
    A("global_atomic_add v4, v2, v3, s[28:29] offset:64 sc0 sc1")
    A("s_waitcnt vmcnt(0)")
    A("v_readfirstlane_b32 s44, v4")
    A("s_cmp_lg_u32 s44, 255")
    A("s_cbranch_scc1 L_end")
    A("s_mov_b32 s62, 0")
    A("s_mov_b32 s63, 0")
    for b in range(3):
        A(f"global_load_dwordx4 v[4:7], v2, s[28:29] offset:{20*b} sc0 sc1")
        A("s_waitcnt vmcnt(0)")
        A("s_mov_b32 s45, 0")
        for k in range(4):
            A(f"v_readfirstlane_b32 s44, v{4+k}")
            A("s_xor_b32 s44, s44, 0xff00ff00")
            A("s_bcnt1_i32_b32 s44, s44")
            A("s_add_u32 s45, s45, s44")
        A("s_sub_u32 s46, 128, s45")
        A("s_cmp_gt_u32 s45, 64")
        A(f"s_cselect_b32 s47, {1<<b}, 0")
        A("s_or_b32 s63, s63, s47")
        A("s_min_u32 s45, s45, s46")
        A("s_add_u32 s62, s62, s45")
    A("s_mul_i32 s63, s63, 20000")
    A("s_mul_i32 s62, s62, 100")
    A("s_add_u32 s60, s62, s63")
    A("s_add_u32 s60, s60, 10000")
    spin(L, "s60")
    return wrap(L, 256, 256, 24, 72, 0)

if __name__ == "__main__":
    open("var/enc_rmax.s", "w").write(rot(True))
    open("var/enc_rmin.s", "w").write(rot(False))
    open("var/enc_lay.s", "w").write(lay())

def rnd(num, den_log2):
    L = []
    A = L.append
    head(L)
    work(L)
    A("s_mul_i32 s60, s64, 0x9e3779b1")
    A(f"s_lshr_b32 s60, s60, {32-den_log2}")
    A(f"s_cmp_lt_u32 s60, {num}")
    A("s_cselect_b32 s60, 10000, 0")
    A("s_add_u32 s60, s60, 6000")
    A("s_cmp_eq_u32 s2, 0")
    A("s_cselect_b32 s60, s60, 6000")
    A("s_cmp_eq_u32 s34, 0")
    A("s_cselect_b32 s60, s60, 6000")
    spin(L, "s60")
    return wrap(L, 256, 256, 24, 72, 0)

if __name__ == "__main__":
    open("var/enc_rnd25.s", "w").write(rnd(4, 4))
    open("var/enc_rnd44.s", "w").write(rnd(7, 4))
    open("var/enc_rnd56.s", "w").write(rnd(9, 4))
```

```python
from gen import NB, NAME, HDR, wrap
from gen4 import compute
import genlay
MIB = 1 << 20

def work(L):
    A = L.append
    A("v_mov_b32 v11, 0")
    A("global_load_ushort v10, v11, s[8:9]")
    A("v_lshlrev_b32 v1, 4, v0")
    A("s_lshl_b32 s30, s2, 12")
    A("s_mov_b32 s31, 0")
    A("s_waitcnt vmcnt(0)")
    A("v_lshlrev_b32 v10, 16, v10")
    A("v_mov_b32 v11, v10")
    A("L_loop:")
    A("buffer_load_dwordx4 v[18:21], v1, s[16:19], s30 offen nt")
    A("buffer_load_dwordx4 v[14:17], v1, s[12:15], s30 offen nt")
    A("s_waitcnt vmcnt(0)")
    L.extend(compute(14, 18, 2, "v[10:11]"))
    A("buffer_store_dwordx4 v[14:17], v1, s[24:27], s30 offen sc0 sc1")
    A(f"s_add_u32 s30, s30, {MIB}")
    A("s_add_u32 s31, s31, 1")
    A("s_cmp_lt_u32 s31, 36")
    A("s_cbranch_scc1 L_loop")

def spin(L, reg):
    A = L.append
    A("L_spin:")
    A("s_memrealtime s[66:67]")
    A("s_waitcnt lgkmcnt(0)")
    A("s_sub_u32 s44, s66, s64")
    A(f"s_cmp_lt_u32 s44, {reg}")
    A("s_cbranch_scc1 L_spin")

def head(L):
    A = L.append
    A("s_memrealtime s[64:65]")
    A("s_cmp_ge_u32 s2, 256")
    A("s_cbranch_scc1 L_end")
    A("s_load_dwordx2 s[12:13], s[0:1], 0")
    A("s_load_dwordx2 s[16:17], s[0:1], 8")
    A("s_load_dwordx2 s[8:9], s[0:1], 16")
    A("s_load_dwordx2 s[24:25], s[0:1], 24")
    A("s_load_dwordx2 s[28:29], s[0:1], 32")
    A("v_readfirstlane_b32 s34, v0")
    A("s_mov_b32 s20, 0xffff0000")
    A(f"s_mov_b32 s14, {NB}")
    A("s_mov_b32 s15, 0x20000")
    A("s_mov_b32 s18, s14")
    A("s_mov_b32 s19, s15")
    A("s_mov_b32 s26, s14")
    A("s_mov_b32 s27, s15")
    A("s_waitcnt lgkmcnt(0)")

def rot(mx):
    L = []
    A = L.append
    head(L)
    work(L)
    A("s_getreg_b32 s60, hwreg(HW_REG_XCC_ID)")
    A("s_sub_u32 s60, s60, s2")
    A("s_and_b32 s60, s60, 7")
    if not mx:
        A("s_sub_u32 s60, 7, s60")
    A("s_mul_i32 s60, s60, 1000")
    A("s_add_u32 s60, s60, 6000")
    spin(L, "s60")
    return wrap(L, 256, 256, 24, 72, 0)

def lay():
    src = genlay.genlay().split("\n")
    i = next(k for k, l in enumerate(src) if l.startswith(NAME + ":"))
    j = next(k for k, l in enumerate(src) if l.startswith("L_end:"))
    L = ["s_memrealtime s[64:65]"] + [l.strip() for l in src[i + 1:j]]
    A = L.append
    A("s_cmp_lg_u32 s34, 0")
    A("s_cbranch_scc1 L_end")
    A("s_mov_b64 exec, 1")
    A("v_mov_b32 v2, 0")
    A("v_mov_b32 v3, 1")
    A("global_atomic_add v4, v2, v3, s[28:29] offset:64 sc0 sc1")
    A("s_waitcnt vmcnt(0)")
    A("v_readfirstlane_b32 s44, v4")
    A("s_cmp_lg_u32 s44, 255")
    A("s_cbranch_scc1 L_end")
    A("s_mov_b32 s62, 0")
    A("s_mov_b32 s63, 0")
    for b in range(3):
        A(f"global_load_dwordx4 v[4:7], v2, s[28:29] offset:{20*b} sc0 sc1")
        A("s_waitcnt vmcnt(0)")
        A("s_mov_b32 s45, 0")
        for k in range(4):
            A(f"v_readfirstlane_b32 s44, v{4+k}")
            A("s_xor_b32 s44, s44, 0xff00ff00")
            A("s_bcnt1_i32_b32 s44, s44")
            A("s_add_u32 s45, s45, s44")
        A("s_sub_u32 s46, 128, s45")
        A("s_cmp_gt_u32 s45, 64")
        A(f"s_cselect_b32 s47, {1<<b}, 0")
        A("s_or_b32 s63, s63, s47")
        A("s_min_u32 s45, s45, s46")
        A("s_add_u32 s62, s62, s45")
    A("s_mul_i32 s63, s63, 20000")
    A("s_mul_i32 s62, s62, 100")
    A("s_add_u32 s60, s62, s63")
    A("s_add_u32 s60, s60, 10000")
    spin(L, "s60")
    return wrap(L, 256, 256, 24, 72, 0)

if __name__ == "__main__":
    open("var/enc_rmax.s", "w").write(rot(True))
    open("var/enc_rmin.s", "w").write(rot(False))
    open("var/enc_lay.s", "w").write(lay())

def rnd(num, den_log2):
    L = []
    A = L.append
    head(L)
    work(L)
    A("s_mul_i32 s60, s64, 0x9e3779b1")
    A(f"s_lshr_b32 s60, s60, {32-den_log2}")
    A(f"s_cmp_lt_u32 s60, {num}")
    A("s_cselect_b32 s60, 10000, 0")
    A("s_add_u32 s60, s60, 6000")
    A("s_cmp_eq_u32 s2, 0")
    A("s_cselect_b32 s60, s60, 6000")
    A("s_cmp_eq_u32 s34, 0")
    A("s_cselect_b32 s60, s60, 6000")
    spin(L, "s60")
    return wrap(L, 256, 256, 24, 72, 0)

if __name__ == "__main__":
    open("var/enc_rnd25.s", "w").write(rnd(4, 4))
    open("var/enc_rnd44.s", "w").write(rnd(7, 4))
    open("var/enc_rnd56.s", "w").write(rnd(9, 4))

def ptr(reg, sh, bits, unit=100):
    L = []
    A = L.append
    head(L)
    work(L)
    A(f"s_bfe_u32 s60, s{reg}, {(bits << 16) | sh:#x}")
    A(f"s_mul_i32 s60, s60, {unit}")
    A("s_add_u32 s60, s60, 6000")
    A("v_mov_b32 v2, 0")
    A("v_mov_b32 v4, s12")
    A("v_mov_b32 v5, s16")
    A("v_mov_b32 v6, s24")
    A("v_mov_b32 v7, s28")
    A("global_store_dwordx4 v2, v[4:7], s[28:29]")
    spin(L, "s60")
    return wrap(L, 256, 256, 24, 72, 0)

if __name__ == "__main__":
    open("var/enc_po0.s", "w").write(ptr(24, 0, 8))
    open("var/enc_po8.s", "w").write(ptr(24, 8, 7))
    open("var/enc_po15.s", "w").write(ptr(24, 15, 7))
    open("var/enc_px8.s", "w").write(ptr(12, 8, 7))
    open("var/enc_px15.s", "w").write(ptr(12, 15, 7))
    open("var/enc_pf8.s", "w").write(ptr(16, 8, 7))
```

```python
from gen import NB, NAME, HDR, wrap
from gen4 import compute

MIB = 1 << 20


def spin(L, reg, lab):
    A = L.append
    if reg.startswith("s"):
        A(f"s_min_u32 {reg}, {reg}, 200000")
    A(f"{lab}:")
    A("s_memrealtime s[66:67]")
    A("s_waitcnt lgkmcnt(0)")
    A("s_sub_u32 s44, s66, s64")
    A(f"s_cmp_lt_u32 s44, {reg}")
    A(f"s_cbranch_scc1 {lab}")


def encode(L, enc, maxpoll):
    A = L.append
    A("L_enc:")
    A("s_waitcnt lgkmcnt(0)")
    if enc == "tseen":
        A("s_sub_u32 s80, s70, s64")
        A("s_mul_i32 s80, s80, 10")
        A("s_add_u32 s80, s80, 6000")
        spin(L, "s80", "L_sp1")
        A("s_endpgm")
        return
    if enc == "polls":
        A(f"s_sub_u32 s80, {maxpoll}, s31")
        A("s_mul_i32 s80, s80, 1000")
        A("s_add_u32 s80, s80, 6000")
        spin(L, "s80", "L_sp1")
        A("s_endpgm")
        return
    A("s_cmp_lg_u32 s2, 0")
    A("s_cbranch_scc1 L_end")
    spin(L, "5000", "L_sp0")
    A("s_getreg_b32 s81, hwreg(HW_REG_XCC_ID)")
    A("s_bfe_u32 s81, s81, 0x10002")
    A("s_mov_b64 exec, 1")
    for b, base in enumerate((12, 16, 24)):
        A("s_mov_b32 s36, -1")
        A("s_mov_b32 s37, -1")
        A("s_mov_b32 s33, 0")
        A(f"L_samp{b}:")
        for h in range(2):
            A("s_lshl_b32 s44, s33, 15")
            A("s_lshl_b32 s45, s33, 8")
            A("s_add_u32 s44, s44, s45")
            A(f"s_add_u32 s44, s44, {28*MIB + 0x4000 + 0x2000*h}")
            A("v_mov_b32 v2, s44")
            A("s_memtime s[52:53]")
            A("s_waitcnt lgkmcnt(0)")
            A(f"global_load_dword v3, v2, s[{base}:{base+1}]")
            A("s_waitcnt vmcnt(0)")
            A("s_memtime s[54:55]")
            A("s_waitcnt lgkmcnt(0)")
            A("s_sub_u32 s44, s54, s52")
            A(f"s_min_u32 s{36+h}, s{36+h}, s44")
        A("s_add_u32 s33, s33, 1")
        A("s_cmp_lt_u32 s33, 12")
        A(f"s_cbranch_scc1 L_samp{b}")
        A("s_cmp_gt_u32 s36, s37")
        A(f"s_cselect_b32 s{84+b}, 1, 0")
        A(f"s_xor_b32 s{84+b}, s{84+b}, s81")
    A("v_mov_b32 v2, 0")
    for b in range(3):
        A(f"v_mov_b32 v{4+b}, s{84+b}")
    A("global_store_dwordx3 v2, v[4:6], s[28:29] offset:16")
    if enc in "xfo":
        b = "xfo".index(enc)
        A(f"s_xor_b32 s80, s{60+b}, s{84+b}")
        A("s_and_b32 s80, s80, 1")
    elif enc == "fb":
        A("s_or_b32 s80, s60, s61")
        A("s_or_b32 s80, s80, s62")
        A("s_bfe_u32 s80, s80, 0x10009")
    A("s_mul_i32 s80, s80, 10000")
    A("s_add_u32 s80, s80, 10000")
    spin(L, "s80", "L_sp1")
    A("s_endpgm")


def gen5(D=4, K=8, nprobe=24, ld="nt", st="sc0 sc1", diag=False, maxpoll=32, force=None, pref=True, hop=False,
         rounds=3, thr=150, sleep=8, nopub=False, sleep2=0, nowait=False, enc=None):
    N = 36
    assert N % D == 0 and max(D, 4) <= K <= N - D
    L = []
    A = L.append
    ldf = (" " + ld) if ld else ""
    stf = (" " + st) if st else ""
    SO = [36 + k for k in range(D)]
    assert D <= 8
    if diag or enc:
        A("s_memrealtime s[64:65]")
    A("s_cmp_ge_u32 s2, 256")
    A("s_cbranch_scc1 L_end")
    A("s_load_dwordx2 s[12:13], s[0:1], 0")
    A("s_load_dwordx2 s[16:17], s[0:1], 8")
    A("s_load_dwordx2 s[8:9], s[0:1], 16")
    A("s_load_dwordx2 s[24:25], s[0:1], 24")
    A("s_load_dwordx2 s[28:29], s[0:1], 32")
    A("v_readfirstlane_b32 s34, v0")
    if diag:
        for r in (74, 76, 80, 82, 84, 86):
            A(f"s_mov_b32 s{r}, 0")
    A("s_cmp_lt_u32 s34, 256")
    A("s_cbranch_scc1 L_worker")
    A("@HELPER@")
    A("L_worker:")
    A("s_lshr_b32 s44, s2, 3")
    A("s_lshl_b32 s30, s44, 15")
    A("s_and_b32 s45, s2, 2")
    A("s_lshl_b32 s45, s45, 13")
    A("s_and_b32 s46, s2, 1")
    A("s_lshl_b32 s46, s46, 12")
    A("s_add_u32 s30, s30, s45")
    A("s_add_u32 s30, s30, s46")
    A(f"s_add_u32 s30, s30, {32*MIB}")
    A("s_lshr_b32 s45, s2, 2")
    A("s_xor_b32 s44, s44, s45")
    A("s_bitcmp1_b32 s44, 0")
    A("s_cselect_b32 s32, -1, 0")
    A("s_xor_b32 s32, s32, 0xaaaaaaaa")
    A("v_lshlrev_b32 v1, 4, v0")
    A("s_mov_b32 s20, 0xffff0000")
    A(f"s_mov_b32 s14, {NB}")
    A("s_mov_b32 s15, 0x20000")
    A("s_mov_b32 s18, s14")
    A("s_mov_b32 s19, s15")
    A("s_mov_b32 s26, s14")
    A("s_mov_b32 s27, s15")
    A("s_mov_b32 s31, 0")
    T = 2
    AL = 10
    FILL = 12
    B = 14
    A(f"v_mov_b32 v{AL+1}, 0")
    X = [B + 8 * k for k in range(D)]
    F = [B + 8 * k + 4 for k in range(D)]

    def slot_off(k):
        A(f"s_and_b32 s44, s32, 1")
        A(f"s_lshl_b32 s44, s44, 13")
        A(f"s_add_u32 s{SO[k]}, s30, s44")
        A("s_lshr_b32 s32, s32, 1")
        A(f"s_add_u32 s30, s30, {MIB}")

    def load(k):
        A(f"buffer_load_dwordx4 v[{F[k]}:{F[k]+3}], v1, s[16:19], s{SO[k]} offen{ldf}")
        A(f"buffer_load_dwordx4 v[{X[k]}:{X[k]+3}], v1, s[12:15], s{SO[k]} offen{ldf}")

    for k in range(D + 1):
        if k == 4:
            A(f"s_sub_u32 s30, s30, {36*MIB}")
        if k < D:
            slot_off(k)
    A("s_waitcnt lgkmcnt(0)")
    if diag:
        A("s_memrealtime s[80:81]")
    A(f"global_load_ushort v{AL}, v{AL+1}, s[8:9]")
    for k in range(D):
        load(k)
        if k < D - 1:
            A(f"buffer_load_dword v{FILL}, v1, s[12:15], s14 offen")
    if diag:
        A("s_memrealtime s[82:83]")
    A("s_barrier")
    A(f"s_waitcnt vmcnt({3*D-1})")
    A(f"v_lshlrev_b32 v{AL}, 16, v{AL}")
    A(f"v_mov_b32 v{AL+1}, v{AL}")
    if diag:
        A(f"s_waitcnt vmcnt({3*(D-1)})")
        A("s_memrealtime s[66:67]")
    A("L_loop:")
    kp, ks = divmod(K - D, D)
    wp, ws_ = divmod(4 - D, D) if D < 4 else (None, None)
    npad = 0
    for k in range(D):
        A(f"s_waitcnt vmcnt({3*(D-1)})")
        C = compute(X[k], F[k], T, f"v[{AL}:{AL+1}]")
        for j, ins in enumerate(C):
            if hop and j % 20 == 0:
                A(f"L_pad{npad}:")
                A(f"s_cbranch_execz L_pad{npad+1}")
                npad += 1
            A(ins)
        A(f"buffer_store_dwordx4 v[{X[k]}:{X[k]+3}], v1, s[24:27], s{SO[k]} offen{stf}")
        if diag and k in (0, D - 1):
            A("s_cmp_lg_u32 s31, 0")
            A(f"s_cbranch_scc1 L_ds{k}")
            A("s_memrealtime s[84:85]" if k == 0 else "s_memrealtime s[86:87]")
            A(f"L_ds{k}:")
        if ks == k:
            A(f"s_cmp_eq_u32 s31, {kp}")
            A("s_cbranch_scc1 L_resolve")
            A("L_resolved:")
        if ws_ == k:
            A(f"s_cmp_eq_u32 s31, {wp}")
            A(f"s_cselect_b32 s44, {36*MIB}, 0")
            A("s_sub_u32 s30, s30, s44")
        slot_off(k)
        A(f"s_cmp_eq_u32 s31, {N//D-1}")
        A(f"s_cselect_b32 s{SO[k]}, s14, s{SO[k]}")
        load(k)
    A("s_add_u32 s31, s31, 1")
    A(f"s_cmp_lg_u32 s31, {N//D}")
    A("s_cbranch_scc1 L_loop")

    def record():
        L.extend([
            "s_waitcnt vmcnt(0)",
            "s_memrealtime s[68:69]",
            "s_load_dwordx2 s[44:45], s[0:1], 40",
            "s_getreg_b32 s46, hwreg(HW_REG_XCC_ID)",
            "v_lshrrev_b32 v2, 6, v0",
            "s_mul_i32 s47, s2, 5",
            "v_add_u32 v2, s47, v2",
            "v_lshlrev_b32 v2, 4, v2",
            "v_add_u32 v3, 0x100000, v2",
            "s_waitcnt lgkmcnt(0)",
            "v_mov_b32 v4, s64",
            "v_mov_b32 v5, s46",
            "v_mov_b32 v6, s68",
            "v_mov_b32 v7, s66",
            "v_mov_b32 v12, s74",
            "v_mov_b32 v13, s76",
            "v_mov_b32 v14, s70",
            "v_mov_b32 v15, s71",
            "s_mov_b64 exec, 1",
            "global_store_dwordx4 v2, v[4:7], s[44:45]",
            "global_store_dwordx4 v3, v[12:15], s[44:45]",
            "v_add_u32 v3, 0x100000, v3",
            "v_mov_b32 v16, s80",
            "v_mov_b32 v17, s82",
            "v_mov_b32 v18, s84",
            "v_mov_b32 v19, s86",
            "global_store_dwordx4 v3, v[16:19], s[44:45]",
        ])
    if diag:
        A("L_record:")
        record()
    A("s_endpgm")

    A("L_resolve:")
    if hop:
        A(f"L_pad{npad}:")
        A("s_cbranch_execz L_hopped")
    if diag:
        A("s_memrealtime s[76:77]")
    A("v_mov_b32 v3, 0")
    A("L_wait:")
    A("ds_read_b32 v2, v3")
    A("s_waitcnt lgkmcnt(0)")
    A("v_readfirstlane_b32 s32, v2")
    A("s_cmp_eq_u32 s32, 0")
    A("s_cbranch_scc1 L_wait")
    if diag:
        A("s_memrealtime s[70:71]")
        A("s_waitcnt lgkmcnt(0)")
        A("s_mov_b32 s71, 0")
    A("s_branch L_resolved")

    hstart = len(L)
    A("v_mov_b32 v5, 0")
    if nowait:
        m0 = 0
        for i in range(K, N):
            m0 |= (((i - 4) >> 1) & 1) << (i - K)
        A("s_lshr_b32 s45, s2, 2")
        A(f"s_xor_b32 s44, s45, {force}")
        A("s_bitcmp1_b32 s44, 0")
        A("s_cselect_b32 s32, -1, 0")
        A(f"s_xor_b32 s32, s32, {m0:#x}")
        A("v_mov_b32 v4, s32")
        A("ds_write_b32 v5, v4")
    else:
        A("ds_write_b32 v5, v5")
    if pref:
        A("s_getpc_b64 s[50:51]")
        A("L_pc:")
        A(f"s_sub_u32 s50, s50, L_pc-{NAME}")
        A("s_subb_u32 s51, s51, 0")
        A("v_and_b32 v2, 63, v0")
        A("v_lshlrev_b32 v2, 7, v2")
        A(f"v_min_u32 v2, L_end-{NAME}, v2")
        A("global_load_dword v3, v2, s[50:51]")
    A("s_lshl_b32 s45, s2, 15")
    A("s_and_b32 s45, s45, 0x1fffff")
    A("s_lshr_b32 s46, s2, 6")
    A("s_lshl_b32 s46, s46, 9")
    A("s_add_u32 s45, s45, s46")
    A(f"s_add_u32 s45, s45, {28*MIB}")
    A("s_cmp_ge_u32 s2, 24")
    A("s_addc_u32 s35, s2, 0")
    A("s_and_b32 s35, s35, 1")
    A("s_lshl_b32 s46, s35, 13")
    A("s_add_u32 s47, s45, s46")
    A("s_xor_b32 s48, s47, 0x2000")
    A("s_lshr_b32 s49, s2, 3")
    if nprobe > 24:
        A("s_mul_i32 s45, s49, 43")
        A("s_lshr_b32 s45, s45, 7")
        A("s_mul_i32 s45, s45, 3")
        A("s_sub_u32 s49, s49, s45")
    A("s_getreg_b32 s44, hwreg(HW_REG_XCC_ID)")
    A("s_sub_u32 s45, s44, s2")
    A("s_and_b32 s45, s45, 7")
    A("s_lshl_b32 s45, s45, 1")
    A("s_bfe_u32 s44, s44, 0x10002")
    A("s_or_b32 s33, s45, s44")
    A("s_or_b32 s33, s33, 0x100")
    A(f"s_mov_b32 s31, {rounds}")
    A(f"s_cmp_lt_u32 s2, {nprobe}")
    A("s_waitcnt lgkmcnt(0)")
    A("s_cbranch_scc0 L_noprobe")
    A("s_cmp_eq_u32 s49, 0")
    A("s_cselect_b32 s50, s12, s16")
    A("s_cselect_b32 s51, s13, s17")
    A("s_cmp_eq_u32 s49, 2")
    A("s_cselect_b32 s50, s24, s50")
    A("s_cselect_b32 s51, s25, s51")
    A("L_round:")
    A("s_memtime s[52:53]")
    A("s_load_dword s58, s[50:51], s47")
    A("s_load_dword s59, s[50:51], s48")
    A("s_waitcnt lgkmcnt(1)")
    A("s_memtime s[54:55]")
    A("s_waitcnt lgkmcnt(0)")
    A("s_memtime s[56:57]")
    A("s_waitcnt lgkmcnt(0)")
    A("s_sub_u32 s44, s56, s54")
    if diag:
        A("s_sub_u32 s45, s54, s52")
        A("s_lshl_b32 s46, s44, 16")
        A("s_or_b32 s45, s45, s46")
        for r in range(min(rounds, 3)):
            A(f"s_cmp_eq_u32 s31, {rounds - r}")
            A(f"s_cselect_b32 s{80+2*r}, s45, s{80+2*r}")
    if not nopub:
        A(f"s_cmp_gt_u32 s44, {thr}")
        A("s_cbranch_scc1 L_publish")
    A("s_xor_b32 s35, s35, 1")
    A("s_add_u32 s44, s47, 0x400")
    A("s_add_u32 s47, s48, 0x400")
    A("s_mov_b32 s48, s44")
    A("s_sub_u32 s31, s31, 1")
    A("s_cmp_lg_u32 s31, 0")
    A("s_cbranch_scc1 L_round")
    if not nopub:
        A("s_branch L_after")
    A("L_publish:")
    A("s_xor_b32 s33, s33, s35")
    A("s_lshl_b32 s44, s49, 2")
    A("v_mov_b32 v8, s44")
    A("v_mov_b32 v4, s33")
    A("v_mov_b32 v5, 0")
    A("s_mov_b64 exec, 1")
    A("global_atomic_cmpswap v8, v[4:5], s[28:29] sc1")
    A("s_mov_b64 exec, -1")
    if diag:
        A("s_memrealtime s[76:77]")
        A("s_mov_b32 s74, s33")
    A("L_after:")
    A("s_barrier")
    if nowait:
        A("s_endpgm")
    if sleep2:
        A(f"s_sleep {sleep2}")
    A("s_branch L_poll")
    A("L_noprobe:")
    A("s_barrier")
    if nowait:
        A("s_endpgm")
    if hop:
        A("s_waitcnt vmcnt(0)")
        A("s_mov_b64 exec, 0")
        A("s_branch L_pad0")
        A("L_hopped:")
        A("s_mov_b64 exec, -1")
    if sleep:
        A(f"s_sleep {sleep}")
    A("L_poll:")
    if diag:
        A("s_memrealtime s[66:67]")
    A("s_load_dwordx4 s[60:63], s[28:29], 0")
    A(f"s_mov_b32 s31, {maxpoll}")
    A("v_mov_b32 v8, 0")
    A("s_waitcnt lgkmcnt(0)")
    A("L_check:")
    A("s_and_b32 s44, s60, s61")
    A("s_and_b32 s44, s44, s62")
    A("s_bitcmp1_b32 s44, 8")
    A("s_cbranch_scc1 L_have")
    A("global_load_dwordx4 v[4:7], v8, s[28:29] sc1")
    A("s_waitcnt vmcnt(0)")
    A("v_readfirstlane_b32 s60, v4")
    A("v_readfirstlane_b32 s61, v5")
    A("v_readfirstlane_b32 s62, v6")
    A("s_sub_u32 s31, s31, 1")
    A("s_cmp_lg_u32 s31, 0")
    A("s_cbranch_scc1 L_check")
    A("v_and_b32 v8, 63, v0")
    A("v_lshlrev_b32 v8, 2, v8")
    A("v_mov_b32 v4, 0x300" if enc else "v_mov_b32 v4, 0x100")
    A("v_mov_b32 v5, 0")
    A("s_mov_b64 exec, 7")
    A("global_atomic_cmpswap v6, v8, v[4:5], s[28:29] sc0 sc1")
    A("s_waitcnt vmcnt(0)")
    A("s_mov_b64 exec, -1")
    A("v_readlane_b32 s60, v6, 0")
    A("v_readlane_b32 s61, v6, 1")
    A("v_readlane_b32 s62, v6, 2")
    A("L_have:")
    if enc:
        A("s_memrealtime s[70:71]")
    if diag:
        A("s_memrealtime s[70:71]")
        A("s_waitcnt lgkmcnt(0)")
        A(f"s_sub_u32 s71, {maxpoll}, s31")
        A("s_and_b32 s44, s60, 15")
        A("s_lshl_b32 s44, s44, 16")
        A("s_or_b32 s71, s71, s44")
        A("s_and_b32 s44, s61, 1")
        A("s_lshl_b32 s44, s44, 20")
        A("s_or_b32 s71, s71, s44")
        A("s_and_b32 s44, s62, 1")
        A("s_lshl_b32 s44, s44, 21")
        A("s_or_b32 s71, s71, s44")
    A("s_and_b32 s44, s60, s61")
    A("s_or_b32 s45, s60, s61")
    A("s_and_b32 s45, s45, s62")
    A("s_or_b32 s44, s44, s45")
    if force is not None:
        A(f"s_mov_b32 s44, {force}")
    A("s_lshr_b32 s45, s60, 1")
    A("s_add_u32 s45, s45, s2")
    A("s_lshr_b32 s45, s45, 2")
    A("s_xor_b32 s44, s44, s45")
    m = 0
    for i in range(K, N):
        m |= (((i - 4) >> 1) & 1) << (i - K)
    A("s_bitcmp1_b32 s44, 0")
    A("s_cselect_b32 s32, -1, 0")
    A(f"s_xor_b32 s32, s32, {m:#x}")
    A("v_mov_b32 v4, s32")
    A("v_mov_b32 v5, 0")
    A("ds_write_b32 v5, v4")
    if enc:
        A("s_branch L_enc")
    elif diag:
        A("s_branch L_record")
    else:
        A("s_endpgm")
    H = L[hstart:]
    del L[hstart:]
    i = L.index("@HELPER@")
    L[i:i + 1] = H
    if enc:
        encode(L, enc, maxpoll)
    nv = max(B + 8 * D, 20)
    return wrap(L, 256, 320, nv, 96 if (diag or enc) else 64, 64)


if __name__ == "__main__":
    import argparse
    p = argparse.ArgumentParser()
    p.add_argument("-o", required=True)
    p.add_argument("-D", type=int, default=4)
    p.add_argument("-K", type=int, default=8)
    p.add_argument("--nprobe", type=int, default=24)
    p.add_argument("--ld", default="nt")
    p.add_argument("--st", default="sc0 sc1")
    p.add_argument("--diag", action="store_true")
    p.add_argument("--maxpoll", type=int, default=32)
    p.add_argument("--force", type=int, default=None)
    p.add_argument("--nopref", action="store_true")
    p.add_argument("--hop", action="store_true")
    p.add_argument("--rounds", type=int, default=3)
    p.add_argument("--thr", type=int, default=150)
    p.add_argument("--sleep", type=int, default=8)
    p.add_argument("--nopub", action="store_true")
    p.add_argument("--sleep2", type=int, default=0)
    p.add_argument("--nowait", action="store_true")
    p.add_argument("--enc", default=None)
    a = p.parse_args()
    open(a.o, "w").write(gen5(a.D, a.K, a.nprobe, a.ld, a.st, a.diag, a.maxpoll, a.force, not a.nopref, a.hop,
                              a.rounds, a.thr, a.sleep, a.nopub, a.sleep2, a.nowait, a.enc))
```

```python
from gen import NB, NAME, HDR, wrap
from gen4 import compute
from gen5 import encode

MIB = 1 << 20


def gen6(D=3, K=4, nprobe=48, ld="nt", st="sc0 sc1", diag=False, maxpoll=32, thr=200, wait="tlb", sleep=32,
         sleep2=24, enc=None, rnd=True, neutral=False, force=None):
    N = 36
    assert N % D == 0 and max(D, 4) <= K <= N - D
    L = []
    A = L.append
    ldf = (" " + ld) if ld else ""
    stf = (" " + st) if st else ""
    SO = [36 + k for k in range(D)]
    assert D <= 8
    if diag or enc:
        A("s_memrealtime s[64:65]")
    A("s_cmp_ge_u32 s2, 256")
    A("s_cbranch_scc1 L_end")
    A("s_load_dwordx2 s[12:13], s[0:1], 0")
    A("s_load_dwordx2 s[16:17], s[0:1], 8")
    A("s_load_dwordx2 s[8:9], s[0:1], 16")
    A("s_load_dwordx2 s[24:25], s[0:1], 24")
    A("s_load_dwordx2 s[28:29], s[0:1], 32")
    A("v_readfirstlane_b32 s34, v0")
    if diag:
        for r in (74, 76, 80, 82, 84, 86):
            A(f"s_mov_b32 s{r}, 0")
    A("s_lshr_b32 s44, s2, 3")
    A("s_lshl_b32 s30, s44, 15")
    A("s_and_b32 s45, s2, 2")
    A("s_lshl_b32 s45, s45, 13")
    A("s_and_b32 s46, s2, 1")
    A("s_lshl_b32 s46, s46, 12")
    A("s_add_u32 s30, s30, s45")
    A("s_add_u32 s30, s30, s46")
    A("s_cmp_lt_u32 s34, 256")
    A("s_cbranch_scc1 L_worker")
    A("@HELPER@")
    A("L_worker:")
    A(f"s_add_u32 s30, s30, {32*MIB}")
    A("s_lshr_b32 s45, s2, 2")
    A("s_xor_b32 s44, s44, s45")
    A("s_bitcmp1_b32 s44, 0")
    A("s_cselect_b32 s32, -1, 0")
    A("s_xor_b32 s32, s32, 0xaaaaaaaa")
    A("v_lshlrev_b32 v1, 4, v0")
    A("s_mov_b32 s20, 0xffff0000")
    A(f"s_mov_b32 s14, {NB}")
    A("s_mov_b32 s15, 0x20000")
    A("s_mov_b32 s18, s14")
    A("s_mov_b32 s19, s15")
    A("s_mov_b32 s26, s14")
    A("s_mov_b32 s27, s15")
    A("s_mov_b32 s31, 0")
    T = 2
    AL = 10
    FILL = 12
    B = 14
    A(f"v_mov_b32 v{AL+1}, 0")
    X = [B + 8 * k for k in range(D)]
    F = [B + 8 * k + 4 for k in range(D)]

    def slot_off(k):
        A(f"s_and_b32 s44, s32, 1")
        A(f"s_lshl_b32 s44, s44, 13")
        A(f"s_add_u32 s{SO[k]}, s30, s44")
        A("s_lshr_b32 s32, s32, 1")
        A(f"s_add_u32 s30, s30, {MIB}")

    def load(k):
        A(f"buffer_load_dwordx4 v[{F[k]}:{F[k]+3}], v1, s[16:19], s{SO[k]} offen{ldf}")
        A(f"buffer_load_dwordx4 v[{X[k]}:{X[k]+3}], v1, s[12:15], s{SO[k]} offen{ldf}")

    for k in range(D + 1):
        if k == 4:
            A(f"s_sub_u32 s30, s30, {36*MIB}")
        if k < D:
            slot_off(k)
    A("s_waitcnt lgkmcnt(0)")
    if diag:
        A("s_memrealtime s[80:81]")
    A(f"global_load_ushort v{AL}, v{AL+1}, s[8:9]")
    for k in range(D):
        load(k)
        if k < D - 1:
            A(f"buffer_load_dword v{FILL}, v1, s[12:15], s14 offen")
    if diag:
        A("s_memrealtime s[82:83]")
    if wait != "bar":
        A("s_barrier")
    A(f"s_waitcnt vmcnt({3*D-1})")
    if wait == "bar":
        A("s_barrier")
    A(f"v_lshlrev_b32 v{AL}, 16, v{AL}")
    A(f"v_mov_b32 v{AL+1}, v{AL}")
    if diag:
        A(f"s_waitcnt vmcnt({3*(D-1)})")
        A("s_memrealtime s[66:67]")
    A("L_loop:")
    kp, ks = divmod(K - D, D)
    wp, ws_ = divmod(4 - D, D) if D < 4 else (None, None)
    for k in range(D):
        A(f"s_waitcnt vmcnt({3*(D-1)})")
        L.extend(compute(X[k], F[k], T, f"v[{AL}:{AL+1}]"))
        A(f"buffer_store_dwordx4 v[{X[k]}:{X[k]+3}], v1, s[24:27], s{SO[k]} offen{stf}")
        if diag and k in (0, D - 1):
            A("s_cmp_lg_u32 s31, 0")
            A(f"s_cbranch_scc1 L_ds{k}")
            A("s_memrealtime s[84:85]" if k == 0 else "s_memrealtime s[86:87]")
            A(f"L_ds{k}:")
        if ks == k:
            A(f"s_cmp_eq_u32 s31, {kp}")
            A("s_cbranch_scc1 L_resolve")
            A("L_resolved:")
        if ws_ == k:
            A(f"s_cmp_eq_u32 s31, {wp}")
            A(f"s_cselect_b32 s44, {36*MIB}, 0")
            A("s_sub_u32 s30, s30, s44")
        slot_off(k)
        A(f"s_cmp_eq_u32 s31, {N//D-1}")
        A(f"s_cselect_b32 s{SO[k]}, s14, s{SO[k]}")
        load(k)
    A("s_add_u32 s31, s31, 1")
    A(f"s_cmp_lg_u32 s31, {N//D}")
    A("s_cbranch_scc1 L_loop")

    if diag:
        A("L_record:")
        L.extend([
            "s_waitcnt vmcnt(0)",
            "s_memrealtime s[68:69]",
            "s_load_dwordx2 s[44:45], s[0:1], 40",
            "s_getreg_b32 s46, hwreg(HW_REG_XCC_ID)",
            "v_lshrrev_b32 v2, 6, v0",
            "s_mul_i32 s47, s2, 5",
            "v_add_u32 v2, s47, v2",
            "v_lshlrev_b32 v2, 4, v2",
            "v_add_u32 v3, 0x100000, v2",
            "s_waitcnt lgkmcnt(0)",
            "v_mov_b32 v4, s64",
            "v_mov_b32 v5, s46",
            "v_mov_b32 v6, s68",
            "v_mov_b32 v7, s66",
            "v_mov_b32 v12, s74",
            "v_mov_b32 v13, s76",
            "v_mov_b32 v14, s70",
            "v_mov_b32 v15, s71",
            "s_mov_b64 exec, 1",
            "global_store_dwordx4 v2, v[4:7], s[44:45]",
            "global_store_dwordx4 v3, v[12:15], s[44:45]",
            "v_add_u32 v3, 0x100000, v3",
            "v_mov_b32 v16, s80",
            "v_mov_b32 v17, s82",
            "v_mov_b32 v18, s84",
            "v_mov_b32 v19, s86",
            "global_store_dwordx4 v3, v[16:19], s[44:45]",
        ])
    A("s_endpgm")

    A("L_resolve:")
    if diag:
        A("s_memrealtime s[76:77]")
    A("v_mov_b32 v3, 0")
    A("L_wait:")
    A("ds_read_b32 v2, v3")
    A("s_waitcnt lgkmcnt(0)")
    A("v_readfirstlane_b32 s32, v2")
    A("s_cmp_eq_u32 s32, 0")
    A("s_cbranch_scc1 L_wait")
    if diag:
        A("s_memrealtime s[70:71]")
        A("s_waitcnt lgkmcnt(0)")
        A("s_mov_b32 s71, 0")
    A("s_branch L_resolved")

    hstart = len(L)
    if rnd:
        A("s_memtime s[52:53]")
    A("v_mov_b32 v5, 0")
    A("ds_write_b32 v5, v5")
    A("s_mov_b64 exec, 1")
    A("s_lshr_b32 s49, s2, 3")
    if nprobe > 24:
        A("s_mul_i32 s45, s49, 43")
        A("s_lshr_b32 s45, s45, 7")
        A("s_mul_i32 s45, s45, 3")
        A("s_sub_u32 s49, s49, s45")
    A("s_getreg_b32 s44, hwreg(HW_REG_XCC_ID)")
    A("s_sub_u32 s45, s44, s2")
    A("s_and_b32 s45, s45, 7")
    A("s_lshl_b32 s45, s45, 1")
    A("s_bfe_u32 s44, s44, 0x10002")
    A("s_or_b32 s33, s45, s44")
    A("s_or_b32 s33, s33, 0x100")
    A("v_mov_b32 v8, s30")
    A(f"s_cmp_lt_u32 s2, {nprobe}")
    A("s_waitcnt lgkmcnt(0)")
    A("s_cbranch_scc0 L_noprobe")
    A("s_cmp_eq_u32 s49, 0")
    A("s_cselect_b32 s50, s12, s16")
    A("s_cselect_b32 s51, s13, s17")
    A("s_cmp_eq_u32 s49, 2")
    A("s_cselect_b32 s50, s24, s50")
    A("s_cselect_b32 s51, s25, s51")
    if rnd:
        A("s_mul_i32 s47, s52, 0x9e3779b1")
        A("s_lshr_b32 s47, s47, 8")
        A("s_and_b32 s47, s47, 0xffff80")
    else:
        A("s_mul_i32 s47, s2, 0xa080")
    A("s_add_u32 s47, s47, 0x4000")
    A("s_add_u32 s46, s47, s50")
    A("s_xor_b32 s48, s46, 0x2000")
    A("s_sub_u32 s48, s48, s50")
    if diag:
        A("s_memtime s[52:53]")
    A("s_load_dword s58, s[50:51], s47")
    A("s_load_dword s59, s[50:51], s48")
    if wait == "tlb":
        for j, bs in enumerate((12, 16, 24)):
            A(f"global_load_dword v{10+j}, v8, s[{bs}:{bs+1}] nt")
    A("s_lshr_b32 s45, s46, 8")
    A("s_xor_b32 s45, s45, s46")
    A("s_bfe_u32 s45, s45, 0x1000d")
    A("s_xor_b32 s33, s33, s45")
    A("s_lshl_b32 s44, s49, 2")
    A("v_mov_b32 v9, s44")
    A("v_mov_b32 v4, s33")
    A("s_waitcnt lgkmcnt(1)")
    A("s_memtime s[54:55]")
    A("s_waitcnt lgkmcnt(0)")
    A("s_memtime s[56:57]")
    A("s_waitcnt lgkmcnt(0)")
    A("s_sub_u32 s44, s56, s54")
    if diag:
        A("s_sub_u32 s45, s54, s52")
        A("s_lshl_b32 s46, s44, 16")
        A("s_or_b32 s80, s45, s46")
        A("s_mov_b32 s82, s33")
    A(f"s_cmp_gt_u32 s44, {thr}")
    A("s_cbranch_scc0 L_after")
    A("global_atomic_cmpswap v9, v[4:5], s[28:29] sc1")
    if diag:
        A("s_memrealtime s[76:77]")
        A("s_mov_b32 s74, s33")
    if wait == "sleep":
        A("L_after:")
        A("s_barrier")
        A(f"s_sleep {sleep2}")
        A("s_branch L_poll")
        A("L_noprobe:")
        A("s_barrier")
        A(f"s_sleep {sleep}")
        A("L_poll:")
    elif wait == "bar":
        A("L_after:")
        A("L_noprobe:")
        A("s_barrier")
    else:
        A("s_branch L_after")
        A("L_noprobe:")
        for j, bs in enumerate((12, 16, 24)):
            A(f"global_load_dword v{10+j}, v8, s[{bs}:{bs+1}] nt")
        A("L_after:")
        A("s_barrier")
    A("s_mov_b32 s46, 0xcccccccc")
    A("s_mov_b32 s47, s46")
    for j, bs in enumerate((12, 16, 24)):
        A(f"s_add_u32 s44, s{bs}, s30")
        A("s_bfe_u32 s45, s44, 0x20014")
        A(f"s_lshr_b64 s[{52+2*j}:{53+2*j}], s[46:47], s45")
        A(f"s_bfe_u32 s{53+2*j}, s44, 0x1000d")
    if wait == "tlb":
        A("s_waitcnt vmcnt(0)")
    if diag:
        A("s_memrealtime s[66:67]")
    A("s_load_dwordx4 s[60:63], s[28:29], 0")
    A(f"s_mov_b32 s31, {maxpoll}")
    A("v_mov_b32 v8, 0")
    A("s_waitcnt lgkmcnt(0)")
    A("L_check:")
    A("s_and_b32 s44, s60, s61")
    A("s_and_b32 s44, s44, s62")
    A("s_bitcmp1_b32 s44, 8")
    A("s_cbranch_scc1 L_have")
    A("global_load_dwordx4 v[4:7], v8, s[28:29] sc1")
    A("s_waitcnt vmcnt(0)")
    A("v_readfirstlane_b32 s60, v4")
    A("v_readfirstlane_b32 s61, v5")
    A("v_readfirstlane_b32 s62, v6")
    A("s_sub_u32 s31, s31, 1")
    A("s_cmp_lg_u32 s31, 0")
    A("s_cbranch_scc1 L_check")
    A("s_mov_b64 exec, 7")
    A("v_and_b32 v8, 63, v0")
    A("v_lshlrev_b32 v8, 2, v8")
    A("v_mov_b32 v4, 0x300" if enc else "v_mov_b32 v4, 0x100")
    A("v_mov_b32 v5, 0")
    A("global_atomic_cmpswap v6, v8, v[4:5], s[28:29] sc0 sc1")
    A("s_waitcnt vmcnt(0)")
    A("v_readlane_b32 s60, v6, 0")
    A("v_readlane_b32 s61, v6, 1")
    A("v_readlane_b32 s62, v6, 2")
    A("L_have:")
    if enc:
        A("s_memrealtime s[70:71]")
    if diag:
        A("s_memrealtime s[70:71]")
        A("s_waitcnt lgkmcnt(0)")
        A(f"s_sub_u32 s71, {maxpoll}, s31")
        A("s_and_b32 s44, s60, 15")
        A("s_lshl_b32 s44, s44, 16")
        A("s_or_b32 s71, s71, s44")
        A("s_and_b32 s44, s61, 1")
        A("s_lshl_b32 s44, s44, 20")
        A("s_or_b32 s71, s71, s44")
        A("s_and_b32 s44, s62, 1")
        A("s_lshl_b32 s44, s44, 21")
        A("s_or_b32 s71, s71, s44")
    for j in range(3):
        A(f"s_xor_b32 s44, s{60+j}, s{53+2*j}")
        A("s_bfe_i32 s44, s44, 0x10000")
        A(f"s_xor_b32 s{52+2*j}, s{52+2*j}, s44")
    A("s_and_b32 s44, s52, s54")
    A("s_or_b32 s45, s52, s54")
    A("s_and_b32 s45, s45, s56")
    A("s_or_b32 s44, s44, s45")
    A("s_lshr_b32 s45, s60, 1")
    A("s_add_u32 s45, s45, s2")
    A("s_bfe_i32 s45, s45, 0x10002")
    A("s_xor_b32 s32, s44, s45")
    if neutral:
        A("s_xor_b32 s32, s32, 0xaaaaaaaa")
    if force:
        A("s_not_b32 s32, s32")
    if K > 4:
        A(f"s_lshr_b32 s32, s32, {K-4}")
    A("v_mov_b32 v4, s32")
    A("v_mov_b32 v5, 0")
    A("ds_write_b32 v5, v4")
    if enc:
        A("s_branch L_enc")
    elif diag:
        A("s_mov_b64 exec, -1")
        A("s_branch L_record")
    else:
        A("s_endpgm")
    H = L[hstart:]
    del L[hstart:]
    i = L.index("@HELPER@")
    L[i:i + 1] = H
    if enc:
        encode(L, enc, maxpoll)
    nv = max(B + 8 * D, 20)
    return wrap(L, 256, 320, nv, 96 if (diag or enc) else 64, 64)


if __name__ == "__main__":
    import argparse
    p = argparse.ArgumentParser()
    p.add_argument("-o", required=True)
    p.add_argument("-D", type=int, default=3)
    p.add_argument("-K", type=int, default=4)
    p.add_argument("--nprobe", type=int, default=48)
    p.add_argument("--ld", default="nt")
    p.add_argument("--st", default="sc0 sc1")
    p.add_argument("--diag", action="store_true")
    p.add_argument("--maxpoll", type=int, default=32)
    p.add_argument("--thr", type=int, default=200)
    p.add_argument("--wait", default="tlb")
    p.add_argument("--sleep", type=int, default=32)
    p.add_argument("--sleep2", type=int, default=24)
    p.add_argument("--enc", default=None)
    p.add_argument("--nornd", action="store_true")
    p.add_argument("--neutral", action="store_true")
    p.add_argument("--force", type=int, default=0)
    a = p.parse_args()
    open(a.o, "w").write(gen6(a.D, a.K, a.nprobe, a.ld, a.st, a.diag, a.maxpoll, a.thr, a.wait, a.sleep, a.sleep2,
                              a.enc, not a.nornd, a.neutral, a.force))
```
